```python
import torch

def _softmax(x, axis=-1):
    return torch.softmax(x, dim=axis)
def _gelu(x):
    return torch.nn.functional.gelu(x, approximate="tanh")
def _silu(x):
    return torch.nn.functional.silu(x)
def _sigmoid(x):
    return torch.sigmoid(x)
def _layernorm(x, axis=-1, eps=1e-5):
    m = x.mean(dim=axis, keepdim=True)
    v = x.var(dim=axis, keepdim=True, unbiased=False)
    return (x - m) / torch.sqrt(v + eps)
def _scatter_add(tgt, idx, src, axis=0):
    return tgt.clone().index_add_(axis, idx, src)
def _segment_sum(src, seg, n):
    out = torch.zeros((n,) + src.shape[1:], dtype=src.dtype)
    return out.index_add_(0, seg, src)
def _pad(x, pw):
    flat = tuple(v for pair in reversed(pw) for v in pair)
    return torch.nn.functional.pad(x, flat)

kernel_name = 'standalone__rmsnorm__sampling'

def setup_inputs():

    _w = (lambda a: (lambda t: t.to(torch.bfloat16) if t.is_floating_point() else t)(torch.as_tensor(a)))
    B, S, D = 1024, 32, 512
    return {
        "x": _w((lambda *s: torch.randn(*s, dtype=torch.bfloat16) * 0.05)(B, S, D)),
        "g": _w((lambda *s: torch.randn(*s, dtype=torch.bfloat16) * 0.05)(D) + 1.0),
    }

def reference(x, g):
    rms = torch.sqrt((x * x).mean(axis=-1, keepdims=True) + 1e-6)
    return x / rms * g
```

```python
import sys

NAME = "standalone__rmsnorm__sampling"
ROWS = 32768
NBYTES = ROWS * 1024

HEADER = """; Kernarg layout for this problem (40 bytes, ptrs only, base s[0:1]):
"""

def gen(R=4, T=256, ldp="", stp="", gp="", G=4, mapping="linear"):
    W = T // 64
    rows_wg = W * R
    nwg = ROWS // rows_wg
    G = min(G, R)
    o = []
    e = o.append
    e(HEADER.rstrip())
    e(f"; @launch grid=({nwg},1,1) block=({T},1,1) lds=0")
    e('.amdgcn_target "amdgcn-amd-amdhsa--gfx950"')
    e(".text")
    e(f".globl {NAME}_kernel")
    e(".p2align 8")
    e(f".type {NAME}_kernel,@function")
    e(f"{NAME}_kernel:")
    e("    s_load_dwordx4 s[4:7], s[0:1], 0          ; x, g")
    e("    s_load_dwordx2 s[12:13], s[0:1], 16       ; out")
    e(f"    s_cmp_ge_u32 s2, {nwg}")
    e("    s_cbranch_scc1 L_done")
    import math
    lgR = int(math.log2(R))
    lgwg = int(math.log2(rows_wg * 1024))
    if mapping == "xcd":
        lgn = int(math.log2(nwg))
        e("    s_and_b32 s3, s2, 7")
        e(f"    s_lshl_b32 s3, s3, {lgn-3}")
        e("    s_lshr_b32 s2, s2, 3")
        e("    s_or_b32 s2, s2, s3")
    e(f"    s_lshl_b32 s3, s2, {lgwg}")
    e("    v_lshlrev_b32 v1, 4, v0")
    if W > 1:
        e("    v_lshrrev_b32 v2, 6, v0")
        e("    v_and_b32 v1, 0x3f0, v1")
        e(f"    v_lshl_add_u32 v2, v2, {10+lgR}, v1")
        e("    v_add_u32 v2, s3, v2")
    else:
        e("    v_add_u32 v2, s3, v1")
    e(f"    s_mov_b32 s10, {NBYTES}")
    e("    s_mov_b32 s11, 0x00020000")
    e(f"    s_mov_b32 s14, {NBYTES}")
    e("    s_mov_b32 s15, 0x00020000")
    e("    s_mov_b32 s18, 1024")
    e("    s_mov_b32 s19, 0x00020000")
    for k in range(1, (R + 3) // 4):
        e(f"    s_mov_b32 s{39+k}, {4096*k}")
    e("    s_mov_b32 s20, 0xffff0000")
    e("    v_mov_b32 v3, 0x358637bd                  ; eps = 1e-6")
    e("    s_waitcnt lgkmcnt(0)")
    e("    s_mov_b32 s8, s4")
    e("    s_mov_b32 s9, s5")
    e("    s_mov_b32 s16, s6")
    e("    s_mov_b32 s17, s7")
    X = 24
    def soff(r):
        return "0" if r < 4 else f"s{39 + r//4}"
    def ioff(r):
        return f" offset:{(r%4)*1024}" if r % 4 else ""
    sp = lambda p: (" " + p) if p else ""
    e(f"    buffer_load_dwordx4 v[4:7], v1, s[16:19], 0 offen{sp(gp)}")
    for r in range(R):
        e(f"    buffer_load_dwordx4 v[{X+4*r}:{X+4*r+3}], v2, s[8:11], {soff(r)} offen{ioff(r)}{sp(ldp)}")
    e(f"    s_waitcnt vmcnt({R})")
    for i in range(4):
        e(f"    v_lshlrev_b32 v{8+2*i}, 16, v{4+i}")
        e(f"    v_and_b32 v{9+2*i}, s20, v{4+i}")
    stores = 0
    for g0 in range(0, R, G):
        rows = list(range(g0, g0 + G))
        for j, r in enumerate(rows):
            e(f"    s_waitcnt vmcnt({R - 1 - r + stores})")
            b = X + 4 * r
            e(f"    v_dot2_f32_bf16 v{4+j}, v{b}, v{b}, 0")
            for i in range(1, 4):
                e(f"    v_dot2_f32_bf16 v{4+j}, v{b+i}, v{b+i}, v{4+j}")
        e("    s_nop 2")
        lanes = {}
        if G == 4:
            e("    v_permlane32_swap_b32 v4, v5")
            e("    v_permlane32_swap_b32 v6, v7")
            e("    v_add_f32 v4, v4, v5")
            e("    v_add_f32 v6, v6, v7")
            e("    s_nop 1")
            e("    v_permlane16_swap_b32 v4, v6")
            e("    v_add_f32 v4, v4, v6")
            lanes = {0: 0, 2: 16, 1: 32, 3: 48}
        elif G == 2:
            e("    v_permlane32_swap_b32 v4, v5")
            e("    v_add_f32 v4, v4, v5")
            e("    v_mov_b32 v5, v4")
            e("    s_nop 1")
            e("    v_permlane16_swap_b32 v4, v5")
            e("    v_add_f32 v4, v4, v5")
            lanes = {0: 0, 1: 32}
        else:
            e("    v_mov_b32 v5, v4")
            e("    s_nop 1")
            e("    v_permlane32_swap_b32 v4, v5")
            e("    v_add_f32 v4, v4, v5")
            e("    v_mov_b32 v5, v4")
            e("    s_nop 1")
            e("    v_permlane16_swap_b32 v4, v5")
            e("    v_add_f32 v4, v4, v5")
            lanes = {0: 0}
        for m in ("quad_perm:[1,0,3,2]", "quad_perm:[2,3,0,1]", "row_half_mirror", "row_mirror"):
            e("    s_nop 1")
            e(f"    v_add_f32_dpp v4, v4, v4 {m} row_mask:0xf bank_mask:0xf")
        e("    v_fmamk_f32 v4, v4, 0x3b000000, v3")
        e("    v_rsq_f32 v4, v4")
        e("    s_nop 1")
        for j in range(G):
            e(f"    v_readlane_b32 s{24+2*j}, v4, {lanes[j]}")
        for j, r in enumerate(rows):
            b = X + 4 * r
            for i in range(4):
                e(f"    v_lshlrev_b32 v{16+2*i}, 16, v{b+i}")
                e(f"    v_and_b32 v{17+2*i}, s20, v{b+i}")
            for i in range(4):
                e(f"    v_pk_mul_f32 v[{16+2*i}:{17+2*i}], v[{16+2*i}:{17+2*i}], s[{24+2*j}:{25+2*j}] op_sel_hi:[1,0]")
            for i in range(4):
                e(f"    v_pk_mul_f32 v[{16+2*i}:{17+2*i}], v[{16+2*i}:{17+2*i}], v[{8+2*i}:{9+2*i}]")
            for i in range(4):
                e(f"    v_cvt_pk_bf16_f32 v{b+i}, v{16+2*i}, v{17+2*i}")
            e(f"    buffer_store_dwordx4 v[{b}:{b+3}], v2, s[12:15], {soff(r)} offen{ioff(r)}{sp(stp)}")
            stores += 1
    e("L_done:")
    e("    s_endpgm")
    nv = X + 4 * R
    acc = (nv + 3) // 4 * 4
    e('.section .rodata,"a"')
    e(".p2align 6")
    e(f".amdhsa_kernel {NAME}_kernel")
    e(f"  .amdhsa_next_free_vgpr {nv}")
    e("  .amdhsa_next_free_sgpr 48")
    e(f"  .amdhsa_accum_offset {acc}")
    e("  .amdhsa_group_segment_fixed_size 0")
    e("  .amdhsa_kernarg_size 40")
    e("  .amdhsa_user_sgpr_count 2")
    e("  .amdhsa_user_sgpr_kernarg_segment_ptr 1")
    e("  .amdhsa_system_sgpr_workgroup_id_x 1")
    e("  .amdhsa_float_denorm_mode_32 3")
    e(".end_amdhsa_kernel")
    return "\n".join(o) + "\n"

if __name__ == "__main__":
    kw = {}
    out = sys.argv[1]
    for a in sys.argv[2:]:
        k, v = a.split("=")
        kw[k] = int(v) if v.isdigit() else v.replace("+", " ")
    open(out, "w").write(gen(**kw))
```

```python
import sys

NAME = "standalone__rmsnorm__sampling"
ROWS = 32768
NBYTES = ROWS * 1024

HEADER = """; Kernarg layout for this problem (40 bytes, ptrs only, base s[0:1]):
"""

def gen(R=4, T=256, ldp="", stp="", gp="", G=4, mapping="linear", P=0):
    W = T // 64
    rows_wg = W * R
    nwg = ROWS // rows_wg
    G = min(G, R)
    o = []
    e = o.append
    e(HEADER.rstrip())
    e(f"; @launch grid=({nwg},1,1) block=({T},1,1) lds=0")
    e('.amdgcn_target "amdgcn-amd-amdhsa--gfx950"')
    e(".text")
    e(f".globl {NAME}_kernel")
    e(".p2align 8")
    e(f".type {NAME}_kernel,@function")
    e(f"{NAME}_kernel:")
    e("    s_load_dwordx4 s[4:7], s[0:1], 0          ; x, g")
    e("    s_load_dwordx2 s[12:13], s[0:1], 16       ; out")
    e(f"    s_cmp_ge_u32 s2, {nwg}")
    e("    s_cbranch_scc1 L_done")
    import math
    lgR = int(math.log2(R))
    lgwg = int(math.log2(rows_wg * 1024))
    if mapping == "xcd":
        lgn = int(math.log2(nwg))
        e("    s_and_b32 s3, s2, 7")
        e(f"    s_lshl_b32 s3, s3, {lgn-3}")
        e("    s_lshr_b32 s2, s2, 3")
        e("    s_or_b32 s2, s2, s3")
    if mapping == "numa":
        lgW = int(math.log2(W))
        e("    s_lshr_b32 s21, s2, 3")
        e("    s_lshl_b32 s21, s21, 2")
        e("    s_and_b32 s22, s2, 3")
        e("    s_or_b32 s21, s21, s22                    ; sub")
        e(f"    s_lshl_b32 s21, s21, {lgW + lgR}")
        e("    s_lshr_b32 s22, s2, 2")
        e("    s_lshr_b32 s23, s21, 10")
        e("    s_xor_b32 s22, s22, s23")
        if P: e("    s_xor_b32 s22, s22, 1")
        e("    s_and_b32 s22, s22, 1")
        e("    s_lshl_b32 s22, s22, 13")
        e("    v_lshlrev_b32 v1, 4, v0")
        e("    v_lshrrev_b32 v2, 6, v0")
        e("    v_and_b32 v1, 0x3f0, v1")
        e(f"    v_lshl_add_u32 v2, v2, {lgR}, s21          ; q0")
        e("    v_and_b32 v4, 7, v2")
        e("    v_lshrrev_b32 v2, 3, v2")
        e("    v_lshl_add_u32 v4, v4, 10, v1")
        e("    v_lshl_add_u32 v2, v2, 14, v4")
        e("    v_add_u32 v2, s22, v2")
    else:
        e(f"    s_lshl_b32 s3, s2, {lgwg}")
        e("    v_lshlrev_b32 v1, 4, v0")
        if W > 1:
            e("    v_lshrrev_b32 v2, 6, v0")
            e("    v_and_b32 v1, 0x3f0, v1")
            e(f"    v_lshl_add_u32 v2, v2, {10+lgR}, v1")
            e("    v_add_u32 v2, s3, v2")
        else:
            e("    v_add_u32 v2, s3, v1")
    e(f"    s_mov_b32 s10, {NBYTES}")
    e("    s_mov_b32 s11, 0x00020000")
    e(f"    s_mov_b32 s14, {NBYTES}")
    e("    s_mov_b32 s15, 0x00020000")
    e("    s_mov_b32 s18, 1024")
    e("    s_mov_b32 s19, 0x00020000")
    for k in range(1, (R + 3) // 4):
        e(f"    s_mov_b32 s{39+k}, {4096*k if mapping != 'numa' else (k%2)*4096 + (k//2)*16384}")
    e("    s_mov_b32 s20, 0xffff0000")
    e("    v_mov_b32 v3, 0x358637bd                  ; eps = 1e-6")
    e("    s_waitcnt lgkmcnt(0)")
    e("    s_mov_b32 s8, s4")
    e("    s_mov_b32 s9, s5")
    e("    s_mov_b32 s16, s6")
    e("    s_mov_b32 s17, s7")
    X = 24
    def soff(r):
        return "0" if r < 4 else f"s{39 + r//4}"
    def ioff(r):
        return f" offset:{(r%4)*1024}" if r % 4 else ""
    sp = lambda p: (" " + p) if p else ""
    e(f"    buffer_load_dwordx4 v[4:7], v1, s[16:19], 0 offen{sp(gp)}")
    for r in range(R):
        e(f"    buffer_load_dwordx4 v[{X+4*r}:{X+4*r+3}], v2, s[8:11], {soff(r)} offen{ioff(r)}{sp(ldp)}")
    e(f"    s_waitcnt vmcnt({R})")
    for i in range(4):
        e(f"    v_lshlrev_b32 v{8+2*i}, 16, v{4+i}")
        e(f"    v_and_b32 v{9+2*i}, s20, v{4+i}")
    stores = 0
    for g0 in range(0, R, G):
        rows = list(range(g0, g0 + G))
        for j, r in enumerate(rows):
            e(f"    s_waitcnt vmcnt({R - 1 - r + stores})")
            b = X + 4 * r
            e(f"    v_dot2_f32_bf16 v{4+j}, v{b}, v{b}, 0")
            for i in range(1, 4):
                e(f"    v_dot2_f32_bf16 v{4+j}, v{b+i}, v{b+i}, v{4+j}")
        e("    s_nop 2")
        lanes = {}
        if G == 4:
            e("    v_permlane32_swap_b32 v4, v5")
            e("    v_permlane32_swap_b32 v6, v7")
            e("    v_add_f32 v4, v4, v5")
            e("    v_add_f32 v6, v6, v7")
            e("    s_nop 1")
            e("    v_permlane16_swap_b32 v4, v6")
            e("    v_add_f32 v4, v4, v6")
            lanes = {0: 0, 2: 16, 1: 32, 3: 48}
        elif G == 2:
            e("    v_permlane32_swap_b32 v4, v5")
            e("    v_add_f32 v4, v4, v5")
            e("    v_mov_b32 v5, v4")
            e("    s_nop 1")
            e("    v_permlane16_swap_b32 v4, v5")
            e("    v_add_f32 v4, v4, v5")
            lanes = {0: 0, 1: 32}
        else:
            e("    v_mov_b32 v5, v4")
            e("    s_nop 1")
            e("    v_permlane32_swap_b32 v4, v5")
            e("    v_add_f32 v4, v4, v5")
            e("    v_mov_b32 v5, v4")
            e("    s_nop 1")
            e("    v_permlane16_swap_b32 v4, v5")
            e("    v_add_f32 v4, v4, v5")
            lanes = {0: 0}
        for m in ("quad_perm:[1,0,3,2]", "quad_perm:[2,3,0,1]", "row_half_mirror", "row_mirror"):
            e("    s_nop 1")
            e(f"    v_add_f32_dpp v4, v4, v4 {m} row_mask:0xf bank_mask:0xf")
        e("    v_fmamk_f32 v4, v4, 0x3b000000, v3")
        e("    v_rsq_f32 v4, v4")
        e("    s_nop 1")
        for j in range(G):
            e(f"    v_readlane_b32 s{24+2*j}, v4, {lanes[j]}")
        for j, r in enumerate(rows):
            b = X + 4 * r
            for i in range(4):
                e(f"    v_lshlrev_b32 v{16+2*i}, 16, v{b+i}")
                e(f"    v_and_b32 v{17+2*i}, s20, v{b+i}")
            for i in range(4):
                e(f"    v_pk_mul_f32 v[{16+2*i}:{17+2*i}], v[{16+2*i}:{17+2*i}], s[{24+2*j}:{25+2*j}] op_sel_hi:[1,0]")
            for i in range(4):
                e(f"    v_pk_mul_f32 v[{16+2*i}:{17+2*i}], v[{16+2*i}:{17+2*i}], v[{8+2*i}:{9+2*i}]")
            for i in range(4):
                e(f"    v_cvt_pk_bf16_f32 v{b+i}, v{16+2*i}, v{17+2*i}")
            e(f"    buffer_store_dwordx4 v[{b}:{b+3}], v2, s[12:15], {soff(r)} offen{ioff(r)}{sp(stp)}")
            stores += 1
    e("L_done:")
    e("    s_endpgm")
    nv = X + 4 * R
    acc = (nv + 3) // 4 * 4
    e('.section .rodata,"a"')
    e(".p2align 6")
    e(f".amdhsa_kernel {NAME}_kernel")
    e(f"  .amdhsa_next_free_vgpr {nv}")
    e("  .amdhsa_next_free_sgpr 48")
    e(f"  .amdhsa_accum_offset {acc}")
    e("  .amdhsa_group_segment_fixed_size 0")
    e("  .amdhsa_kernarg_size 40")
    e("  .amdhsa_user_sgpr_count 2")
    e("  .amdhsa_user_sgpr_kernarg_segment_ptr 1")
    e("  .amdhsa_system_sgpr_workgroup_id_x 1")
    e("  .amdhsa_float_denorm_mode_32 3")
    e(".end_amdhsa_kernel")
    return "\n".join(o) + "\n"

if __name__ == "__main__":
    kw = {}
    out = sys.argv[1]
    for a in sys.argv[2:]:
        k, v = a.split("=")
        kw[k] = int(v) if v.isdigit() else v.replace("+", " ")
    open(out, "w").write(gen(**kw))
```

```python
import sys, math
from gen1 import HEADER, NAME, ROWS, NBYTES

def reduce_code(e, G, acc):
    a = acc
    if G == 4:
        e(f"    v_permlane32_swap_b32 v{a}, v{a+1}")
        e(f"    v_permlane32_swap_b32 v{a+2}, v{a+3}")
        e(f"    v_add_f32 v{a}, v{a}, v{a+1}")
        e(f"    v_add_f32 v{a+2}, v{a+2}, v{a+3}")
        e("    s_nop 1")
        e(f"    v_permlane16_swap_b32 v{a}, v{a+2}")
        e(f"    v_add_f32 v{a}, v{a}, v{a+2}")
        lanes = {0: 0, 2: 16, 1: 32, 3: 48}
    elif G == 2:
        e(f"    v_permlane32_swap_b32 v{a}, v{a+1}")
        e(f"    v_add_f32 v{a}, v{a}, v{a+1}")
        lanes = {0: 31, 1: 63}
    else:
        lanes = {0: 63}
    for m in ("quad_perm:[1,0,3,2]", "quad_perm:[2,3,0,1]", "row_half_mirror", "row_mirror"):
        e("    s_nop 1")
        e(f"    v_add_f32_dpp v{a}, v{a}, v{a} {m} row_mask:0xf bank_mask:0xf")
    if G <= 2:
        e("    s_nop 1")
        e(f"    v_add_f32_dpp v{a}, v{a}, v{a} row_bcast:15 row_mask:0xa bank_mask:0xf")
    if G == 1:
        e("    s_nop 1")
        e(f"    v_add_f32_dpp v{a}, v{a}, v{a} row_bcast:31 row_mask:0xc bank_mask:0xf")
    return lanes

def gen(R=8, T=256, D=2, G=1, ldp="nt", stp="sc1", gp="", mapping="linear", P=0, rot=0, inter=0, vpad=0, lds=0):
    W = T // 64
    rows_wg = W * R
    nwg = ROWS // rows_wg
    G = min(G, R); D = min(D, R)
    lgR = int(math.log2(R)); lgW = int(math.log2(W))
    o = []; e = o.append
    e(HEADER.rstrip())
    e(f"; @launch grid=({nwg},1,1) block=({T},1,1) lds={lds}")
    e('.amdgcn_target "amdgcn-amd-amdhsa--gfx950"')
    e(".text")
    e(f".globl {NAME}_kernel")
    e(".p2align 8")
    e(f".type {NAME}_kernel,@function")
    e(f"{NAME}_kernel:")
    e("    s_load_dwordx4 s[4:7], s[0:1], 0          ; x, g")
    e("    s_load_dwordx2 s[12:13], s[0:1], 16       ; out")
    e(f"    s_cmp_ge_u32 s2, {nwg}")
    e("    s_cbranch_scc1 L_done")
    numa = mapping == "numa"
    def q2off(q):
        return ((q >> 3) << 14) + ((q & 7) << 10) if numa else q << 10
    if numa:
        e("    s_lshr_b32 s21, s2, 3")
        e("    s_lshl_b32 s21, s21, 2")
        e("    s_and_b32 s22, s2, 3")
        e("    s_or_b32 s21, s21, s22                    ; sub")
        e(f"    s_lshl_b32 s21, s21, {lgW + lgR}")
        e("    s_lshr_b32 s22, s2, 2")
        e("    s_lshr_b32 s23, s21, 10")
        e("    s_xor_b32 s22, s22, s23")
        if P: e("    s_xor_b32 s22, s22, 1")
        e("    s_and_b32 s22, s22, 1")
        e("    s_lshl_b32 s22, s22, 13")
    else:
        e(f"    s_lshl_b32 s21, s2, {lgW + lgR}")
    e("    v_lshlrev_b32 v1, 4, v0")
    e("    v_lshrrev_b32 v2, 6, v0")
    e("    v_and_b32 v1, 0x3f0, v1")
    if inter:
        e(f"    v_add_u32 v2, s21, v2")
        rowq = lambda r: r * W
    else:
        e(f"    v_lshl_add_u32 v2, v2, {lgR}, s21")
        rowq = lambda r: r
    if numa:
        e("    v_and_b32 v4, 7, v2")
        e("    v_lshrrev_b32 v2, 3, v2")
        e("    v_lshl_add_u32 v4, v4, 10, v1")
        e("    v_lshl_add_u32 v2, v2, 14, v4")
        e("    v_add_u32 v2, s22, v2")
    else:
        e("    v_lshl_add_u32 v2, v2, 10, v1")
    if rot:
        assert not inter and R <= 8
        e("    v_lshrrev_b32 v4, 6, v0")
        e(f"    s_lshr_b32 s23, s2, 3")
        e(f"    v_lshl_add_u32 v4, s23, {lgW}, v4")
        e(f"    v_and_b32 v4, {R-1}, v4")
        e("    v_lshlrev_b32 v4, 10, v4")
        e("    v_xor_b32 v2, v2, v4")
    e(f"    s_mov_b32 s10, {NBYTES}")
    e("    s_mov_b32 s11, 0x00020000")
    e(f"    s_mov_b32 s14, {NBYTES}")
    e("    s_mov_b32 s15, 0x00020000")
    e("    s_mov_b32 s18, 1024")
    e("    s_mov_b32 s19, 0x00020000")
    offs = [q2off(rowq(r)) for r in range(R)]
    his = sorted(set(x >> 12 for x in offs if x >> 12))
    sreg = {h: 32 + i for i, h in enumerate(his)}
    if not rot:
        for h in his:
            e(f"    s_mov_b32 s{sreg[h]}, {h << 12}")
    e("    s_mov_b32 s20, 0xffff0000")
    e("    v_mov_b32 v3, 0x358637bd                  ; eps = 1e-6")
    X = 24
    A = X + 4 * R
    if rot:
        for r in range(R):
            e(f"    v_xor_b32 v{A+r}, {r << 10}, v2")
    e("    s_waitcnt lgkmcnt(0)")
    e("    s_mov_b32 s8, s4")
    e("    s_mov_b32 s9, s5")
    e("    s_mov_b32 s16, s6")
    e("    s_mov_b32 s17, s7")
    def addr(r):
        if rot: return f"v{A+r}", "0", ""
        x = offs[r]
        return "v2", (f"s{sreg[x>>12]}" if x >> 12 else "0"), (f" offset:{x & 4095}" if x & 4095 else "")
    sp = lambda p: (" " + p) if p else ""
    ops = []
    def load(r):
        va, so, io = addr(r)
        e(f"    buffer_load_dwordx4 v[{X+4*r}:{X+4*r+3}], {va}, s[8:11], {so} offen{io}{sp(ldp)}")
        ops.append(("L", r))
    def wait(op):
        n = len(ops) - 1 - ops.index(op)
        e(f"    s_waitcnt vmcnt({n})")
    e(f"    buffer_load_dwordx4 v[4:7], v1, s[16:19], 0 offen{sp(gp)}")
    ops.append(("G", 0))
    nxt = 0
    while nxt < D:
        load(nxt); nxt += 1
    wait(("G", 0))
    for i in range(4):
        e(f"    v_lshlrev_b32 v{8+2*i}, 16, v{4+i}")
        e(f"    v_and_b32 v{9+2*i}, s20, v{4+i}")
    for g0 in range(0, R, G):
        rows = list(range(g0, g0 + G))
        for j, r in enumerate(rows):
            wait(("L", r))
            if nxt < R:
                load(nxt); nxt += 1
            b = X + 4 * r
            e(f"    v_dot2_f32_bf16 v{4+j}, v{b}, v{b}, 0")
            for i in range(1, 4):
                e(f"    v_dot2_f32_bf16 v{4+j}, v{b+i}, v{b+i}, v{4+j}")
        e("    s_nop 2" if G > 1 else "    s_nop 0")
        lanes = reduce_code(e, G, 4)
        e("    v_fmamk_f32 v4, v4, 0x3b000000, v3")
        e("    v_rsq_f32 v4, v4")
        e("    s_nop 1")
        for j in range(G):
            e(f"    v_readlane_b32 s{24+2*j}, v4, {lanes[j]}")
        for j, r in enumerate(rows):
            b = X + 4 * r
            for i in range(4):
                e(f"    v_lshlrev_b32 v{16+2*i}, 16, v{b+i}")
                e(f"    v_and_b32 v{17+2*i}, s20, v{b+i}")
            for i in range(4):
                e(f"    v_pk_mul_f32 v[{16+2*i}:{17+2*i}], v[{16+2*i}:{17+2*i}], s[{24+2*j}:{25+2*j}] op_sel_hi:[1,0]")
            for i in range(4):
                e(f"    v_pk_mul_f32 v[{16+2*i}:{17+2*i}], v[{16+2*i}:{17+2*i}], v[{8+2*i}:{9+2*i}]")
            for i in range(4):
                e(f"    v_cvt_pk_bf16_f32 v{b+i}, v{16+2*i}, v{17+2*i}")
            va, so, io = addr(r)
            e(f"    buffer_store_dwordx4 v[{b}:{b+3}], {va}, s[12:15], {so} offen{io}{sp(stp)}")
            ops.append(("S", r))
    e("L_done:")
    e("    s_endpgm")
    nv = max(X + 4 * R + (R if rot else 0), vpad)
    acc = (nv + 3) // 4 * 4
    e('.section .rodata,"a"')
    e(".p2align 6")
    e(f".amdhsa_kernel {NAME}_kernel")
    e(f"  .amdhsa_next_free_vgpr {nv}")
    e("  .amdhsa_next_free_sgpr 56")
    e(f"  .amdhsa_accum_offset {acc}")
    e("  .amdhsa_group_segment_fixed_size 0")
    e("  .amdhsa_kernarg_size 40")
    e("  .amdhsa_user_sgpr_count 2")
    e("  .amdhsa_user_sgpr_kernarg_segment_ptr 1")
    e("  .amdhsa_system_sgpr_workgroup_id_x 1")
    e("  .amdhsa_float_denorm_mode_32 3")
    e(".end_amdhsa_kernel")
    return "\n".join(o) + "\n"

if __name__ == "__main__":
    kw = {}
    out = sys.argv[1]
    for a in sys.argv[2:]:
        k, v = a.split("=")
        kw[k] = int(v) if v.isdigit() else v.replace("+", " ")
    open(out, "w").write(gen(**kw))
```

```python
import sys, math
from gen1 import HEADER, NAME, ROWS, NBYTES

def gen(R=16, T=512, D=2, U=4, S=1, M=5, DELTA=1, PD=0, PMAX=40, ldp="nt", stp="sc1", pp="nt", pol="sc1",
        SM=1, diag=0, force=-1, lds=0, exact=1, LM=None, rnd=1, WB=0, HM=0x5bd1e995, NVP=1):
    W = T // 64
    assert W in (8, 16) and R % U == 0 and S <= D - 1 and D <= U - 1 and D <= 3
    nwg = ROWS // (W * R)
    assert nwg == 256
    span = W * R * 2048
    lgspan = int(math.log2(span))
    stride = W * 2048
    if LM is None: LM = M
    o = []; e = o.append
    sp = lambda p: (" " + p) if p else ""
    e(HEADER.rstrip())
    e(f"; @launch grid=({nwg},1,1) block=({T},1,1) lds={lds}")
    e('.amdgcn_target "amdgcn-amd-amdhsa--gfx950"')
    e(".text")
    e(f".globl {NAME}_kernel")
    e(".p2align 8")
    e(f".type {NAME}_kernel,@function")
    e(f"{NAME}_kernel:")
    SX, SG, SO = 12, 16, 28
    if diag:
        e("    s_memrealtime s[50:51]")
        e("    s_load_dwordx2 s[64:65], s[0:1], 32")
    if force < 0 and rnd:
        e("    s_memrealtime s[40:41]")
    e(f"    s_load_dwordx2 s[{SX}:{SX+1}], s[0:1], 0     ; x")
    e(f"    s_load_dwordx2 s[{SG}:{SG+1}], s[0:1], 8     ; g")
    e(f"    s_load_dwordx2 s[{SO}:{SO+1}], s[0:1], 16    ; out")
    e("    s_load_dwordx2 s[10:11], s[0:1], 24       ; debug")
    if force < 0: e("    s_load_dwordx2 s[32:33], s[0:1], 24")
    e(f"    s_cmp_ge_u32 s2, {nwg}")
    e("    s_cbranch_scc1 L_done")
    e("    s_lshr_b32 s48, s2, 3                     ; index among the workgroups with equal id % 8")
    e("    s_and_b32 s22, s2, 3")
    e("    s_lshl2_add_u32 s21, s48, s22")
    e(f"    s_lshl_b32 s21, s21, {lgspan}")
    e("    s_lshr_b32 s23, s2, 2")
    e("    s_lshr_b32 s9, s21, 21")
    e("    s_xor_b32 s9, s9, s23")
    e("    v_lshrrev_b32 v2, 6, v0                   ; wave")
    e("    v_lshlrev_b32 v1, 4, v0")
    e("    v_readfirstlane_b32 s3, v2")
    e("    v_and_b32 v1, 0x3f0, v1                   ; lane*16")
    if W > 8:
        e("    v_and_b32 v4, 7, v2")
        e("    v_lshrrev_b32 v2, 3, v2")
        e("    v_lshl_add_u32 v4, v4, 10, v1")
        e("    v_lshl_add_u32 v2, v2, 14, v4")
    else:
        e("    v_lshl_add_u32 v2, v2, 10, v1")
    e("    v_add_u32 v2, s21, v2")
    e(f"    s_mov_b32 s{SX+2}, {NBYTES}")
    e(f"    s_mov_b32 s{SX+3}, 0x00020000")
    e(f"    s_mov_b32 s{SG+2}, 1024")
    e(f"    s_mov_b32 s{SG+3}, 0x00020000")
    e(f"    s_mov_b32 s{SO+2}, s{SX+2}")
    e(f"    s_mov_b32 s{SO+3}, 0x00020000")
    e("    s_mov_b32 s20, 0xffff0000")
    e("    s_mov_b32 s6, 0                           ; pass")
    e("    v_mov_b32 v3, 0x358637bd                  ; eps = 1e-6")
    e("    v_bfrev_b32 v22, 2")
    X = 24
    GP = X + 4 * U
    A = GP + 4
    if S:
        e("    s_xor_b32 s49, s23, s3")
        e("    s_and_b32 s49, s49, 1")
        e("    s_lshl_b32 s49, s49, 13")
        e(f"    v_add_u32 v{A}, s49, v2")
        for r in range(1, S):
            e(f"    v_add_u32 v{A+r}, {stride}, v{A+r-1}")
    e("    s_or_b32 s8, s2, s3")
    if force < 0:
        e(f"    s_cselect_b32 s7, {M}, {LM}")
        e("    s_getreg_b32 s27, hwreg(HW_REG_XCC_ID, 0, 3)")
        e("    s_lshl_b32 s45, s27, 4")
        e("    s_lshr_b32 s27, s27, 2")
        e("    s_and_b32 s46, s48, 1")
        e("    s_lshl_b32 s46, s46, 13")
        e("    s_and_b32 s47, s21, 0x1e00000")
        e("    s_or_b32 s46, s46, s47")
        e("    s_lshr_b32 s47, s21, 21")
        e("    s_xor_b32 s47, s47, s48")
        e("    s_xor_b32 s27, s27, s47")
        e(f"    s_mul_i32 s47, s2, {HM}")
        e("    v_lshrrev_b32 v23, 4, v1")
        e("    v_min_u32 v14, 16, v23")
        e("    v_add_u32 v23, s45, v23")
        e("    v_cmp_eq_u32 vcc, 16, v14")
        e("    s_add_u32 s44, s45, s48")
        e("    s_add_u32 s34, s45, 16")
        e("    s_mov_b32 s35, 0x00020000")
        e("    v_mov_b32 v20, s44")
        e("    v_lshlrev_b32 v14, 3, v14")
        e("    v_cndmask_b32 v23, v23, v14, vcc")
    if diag:
        e("    s_mov_b32 s54, 0")
        e("    s_mov_b32 s55, 0")
        e("    s_mov_b32 s62, 0")
    e("    s_cmp_lg_u32 s3, 0")
    e("    s_waitcnt lgkmcnt(0)")
    def load(b):
        e(f"    buffer_load_dwordx4 v[{X+4*b}:{X+4*b+3}], v{A+b}, s[{SX}:{SX+3}], 0 offen{sp(ldp)}")
    def dummy():
        e(f"    buffer_load_ubyte v5, v22, s[{SG}:{SG+3}], 0 offen")
    def unpack_g():
        for i in range(4):
            e(f"    v_lshlrev_b32 v{8+2*i}, 16, v{GP+i}")
            e(f"    v_and_b32 v{9+2*i}, s20, v{GP+i}")
    if force < 0:
        e("    s_cbranch_scc1 L_noprobe")
        if not NVP:
            e("    s_cmp_ge_u32 s48, 16")
            e("    s_cbranch_scc1 L_noprobe")
        if rnd:
            e("    s_xor_b32 s40, s40, s47")
            e("    s_mul_i32 s40, s40, 0x9e3779b1")
            e("    s_lshr_b32 s40, s40, 11")
            e("    s_and_b32 s40, s40, 0x1fdf80")
            e("    s_or_b32 s46, s46, s40")
        e("    v_mov_b32 v16, s46")
        e("    v_xor_b32 v17, 0x2000, v16")
        e("    s_mov_b64 exec, 1")
        if diag == 2: e("    s_memtime s[36:37]")
        e(f"    buffer_load_dword v18, v16, s[{SX}:{SX+3}], 0 offen{sp(pp)}")
        e(f"    buffer_load_dword v19, v17, s[{SX}:{SX+3}], 0 offen{sp(pp)}")
        e("    s_mov_b64 exec, 0x1ffff")
        e(f"    global_load_ubyte v21, v23, s[10:11]{sp(pol)}")
        e("    s_mov_b64 exec, -1")
        e("L_noprobe:")
        e("    s_barrier")
    e(f"    buffer_load_dwordx4 v[{GP}:{GP+3}], v1, s[{SG}:{SG+3}], 0 offen")
    for r in range(S): load(r)
    n_after = 2 + S
    if force < 0:
        e("    s_cmp_lg_u32 s3, 0")
        e("    s_cbranch_scc1 L_wait")
        if not NVP:
            e("    s_cmp_lt_u32 s48, 16")
            e("    s_cbranch_scc1 L_voter")
            e(f"    s_waitcnt vmcnt({S})")
            e("    s_branch L_pd")
            e("L_voter:")
        e(f"    s_waitcnt vmcnt({n_after + 1})")
        if diag == 2: e("    s_memtime s[38:39]")
        for i in range(DELTA):
            e("    s_nop 7")
        e("    s_getreg_b32 s44, hwreg(HW_REG_IB_STS, 0, 4)")
        e(f"    s_cmp_le_u32 s44, {n_after}")
        e("    s_addc_u32 s44, s27, 0")
        e("    s_and_b32 s44, s44, 1")
        e("    s_add_u32 s44, s44, 1")
        e("    v_mov_b32 v16, s44")
        e("    s_mov_b64 exec, 1")
        e(f"    buffer_store_byte v16, v20, s[32:35], 0 offen")
        e("    s_mov_b64 exec, -1")
        if diag:
            e("    s_cmp_lt_u32 s48, 16")
            e("    s_cselect_b32 s54, s44, 0")
            if diag == 2:
                e(f"    s_waitcnt vmcnt({n_after + 1})")
                e("    s_memtime s[56:57]")
                e("    s_waitcnt lgkmcnt(0)")
                e("    s_sub_u32 s38, s38, s36")
                e("    s_sub_u32 s56, s56, s36")
                e("    s_lshl_b32 s56, s56, 16")
                e("    s_or_b32 s55, s56, s38")
                e("    s_mov_b32 s63, s46")
            else:
                e("    s_memrealtime s[56:57]")
                e("    s_waitcnt lgkmcnt(0)")
                e("    s_mov_b32 s55, s56")
        e(f"    s_waitcnt vmcnt({n_after + 1 - WB})")
        e("L_pd:")
        for i in range(PD):
            e("    s_nop 7")
        e("L_wait:")
        e("    s_barrier")
        if SM:
            e("    s_load_dwordx4 s[40:43], s[10:11], s45")
        e("    s_mov_b32 s49, 0")
        if SM:
            e("    s_mov_b32 s46, 0x01010101")
            e("    s_mov_b32 s47, s46")
            e("    s_waitcnt lgkmcnt(0)")
            e("    s_bcnt1_i32_b64 s26, s[40:41]")
            e("    s_bcnt1_i32_b64 s58, s[42:43]")
            e("    s_and_b64 s[40:41], s[40:41], s[46:47]")
            e("    s_and_b64 s[42:43], s[42:43], s[46:47]")
            e("    s_add_u32 s58, s58, s26")
            e("    s_bcnt1_i32_b64 s44, s[40:41]")
            e("    s_bcnt1_i32_b64 s26, s[42:43]")
            e("    s_add_u32 s44, s44, s26")
            e("    s_sub_u32 s58, s58, s44")
            e("    s_absdiff_i32 s59, s58, s44")
            e("    s_cmp_lt_u32 s59, s7")
            e("    s_cbranch_scc1 L_poll")
        else:
            e("    s_branch L_poll")
        e("L_decided:")
        if diag:
            e("    s_add_u32 s49, s49, 1")
            e("    s_lshl_b32 s49, s49, 8")
            e("    s_or_b32 s54, s54, s49")
            e("    s_lshl_b32 s49, s44, 16")
            e("    s_or_b32 s54, s54, s49")
            e("    s_lshl_b32 s49, s58, 24")
            e("    s_or_b32 s54, s54, s49")
        e("    s_cmp_gt_u32 s58, s44")
        e("    s_cselect_b32 s26, 2, 1                   ; G + 1")
    else:
        e(f"    s_mov_b32 s26, {force + 1}")
    e("    s_cmp_eq_u32 s8, 0")
    e("    s_cbranch_scc1 L_publish")
    e("L_flagged:")
    e("    s_add_u32 s44, s26, s9")
    e("    s_andn2_b32 s44, 1, s44")
    e("    s_lshl_b32 s44, s44, 13")
    if S: e(f"    s_add_u32 s44, s44, {S * stride}")
    e(f"    v_add_u32 v{A+S}, s44, v2")
    if diag:
        e("    s_memrealtime s[52:53]")
    for r in range(S): dummy()
    for r in range(S, D):
        if r > S: e(f"    v_add_u32 v{A+r}, {stride}, v{A+r-1}")
        load(r)
        dummy()
    e(f"    s_mov_b32 s4, {R // U}")
    e(f"    s_waitcnt vmcnt({2 * D})")
    unpack_g()
    def row(b, step):
        nb = (b + D) % U; pb = (b + D - 1) % U
        d = X + 4 * b
        e(f"    v_add_u32 v{A+nb}, {step}, v{A+pb}")
        e(f"    s_waitcnt vmcnt({2 * D - 1})")
        load(nb)
        e(f"    v_dot2_f32_bf16 v4, v{d}, v{d}, 0")
        for i in range(1, 4):
            e(f"    v_dot2_f32_bf16 v4, v{d+i}, v{d+i}, v4")
        un = []
        pr = [16, 18, 20, 6]
        for i in range(4):
            un.append(f"    v_lshlrev_b32 v{pr[i]}, 16, v{d+i}")
            un.append(f"    v_and_b32 v{pr[i]+1}, s20, v{d+i}")
        dpp = lambda m: e(f"    v_add_f32_dpp v4, v4, v4 {m} bank_mask:0xf")
        e(un[0]); e(un[1]); e(un[2])
        dpp("quad_perm:[1,0,3,2] row_mask:0xf")
        e(un[3]); e(un[4])
        dpp("quad_perm:[2,3,0,1] row_mask:0xf")
        e(un[5]); e(un[6])
        dpp("row_half_mirror row_mask:0xf")
        e(un[7]); e("    s_nop 0")
        dpp("row_mirror row_mask:0xf")
        e("    s_nop 1")
        dpp("row_bcast:15 row_mask:0xa")
        e("    s_nop 1")
        dpp("row_bcast:31 row_mask:0xc")
        if exact:
            e("    v_cvt_pk_bf16_f32 v4, 0, v4")
            e("    v_fmamk_f32 v4, v4, 0x3b000000, v3        ; + eps")
            e("    v_cvt_pk_bf16_f32 v4, 0, v4")
            e("    v_sqrt_f32 v4, v4")
            e("    s_nop 0")
            e("    v_cvt_pk_bf16_f32 v4, 0, v4")
            e("    v_rcp_f32 v4, v4")
        else:
            e("    v_fmamk_f32 v4, v4, 0x3b000000, v3")
            e("    v_rsq_f32 v4, v4")
        e("    s_nop 0")
        e("    v_readlane_b32 s24, v4, 63")
        e("    s_nop 1")
        for i in range(4):
            e(f"    v_pk_mul_f32 v[{pr[i]}:{pr[i]+1}], v[{pr[i]}:{pr[i]+1}], s[24:25] op_sel_hi:[1,0]")
        for i in range(4):
            e(f"    v_pk_mul_f32 v[{pr[i]}:{pr[i]+1}], v[{pr[i]}:{pr[i]+1}], v[{8+2*i}:{9+2*i}]")
        for i in range(4):
            e(f"    v_cvt_pk_bf16_f32 v{d+i}, v{pr[i]}, v{pr[i]+1}")
        e(f"    buffer_store_dwordx4 v[{d}:{d+3}], v{A+b}, s[{SO}:{SO+3}], 0 offen{sp(stp)}")
    e("L_loop:")
    e("    s_sub_u32 s4, s4, 1")
    e("    s_cmp_eq_u32 s4, 0")
    e("    s_cselect_b32 s5, 0x40000000, 0")
    e(f"    s_or_b32 s5, s5, {stride}")
    for b in range(U):
        row(b, "s5" if b >= U - D else str(stride))
    e("    s_cmp_lg_u32 s4, 0")
    e("    s_cbranch_scc1 L_loop")
    e("    s_load_dword s27, s[10:11], 128")
    e("    s_waitcnt lgkmcnt(0)")
    e("    s_cmp_eq_u32 s27, s26")
    e("    s_cbranch_scc0 L_slow")
    e("L_fin:")
    if diag:
        e(f"""    s_waitcnt vmcnt(0)
    s_memrealtime s[60:61]
    s_mov_b32 s66, 0x1000000
    s_mov_b32 s67, 0x00020000
    s_getreg_b32 s70, hwreg(HW_REG_XCC_ID)
    s_getreg_b32 s71, hwreg(HW_REG_HW_ID)
    s_and_b32 s70, s70, 15
    s_lshl_b32 s70, s70, 24
    s_and_b32 s71, s71, 0xffffff
    s_or_b32 s70, s70, s71
    s_mul_i32 s68, s2, {W}
    s_add_u32 s68, s68, s3
    s_lshl_b32 s68, s68, 5
    s_cmp_eq_u32 s62, 2
    s_cselect_b32 s69, 3, 0
    s_xor_b32 s26, s26, s69
    s_waitcnt lgkmcnt(0)
    v_mov_b32 v4, s50
    v_mov_b32 v5, {"s63" if diag == 2 else "s52"}
    v_mov_b32 v6, s60
    v_mov_b32 v7, s26
    v_mov_b32 v8, s54
    v_mov_b32 v9, s55
    v_mov_b32 v10, s62
    v_mov_b32 v11, s70
    v_mov_b32 v12, s68
    s_mov_b64 exec, 1
    buffer_store_dwordx4 v[4:7], v12, s[64:67], 0 offen
    buffer_store_dwordx4 v[8:11], v12, s[64:67], 0 offen offset:16""")
    e("L_done:")
    e("    s_endpgm")
    e("L_publish:")
    e("    s_mov_b64 exec, 1")
    e("    v_mov_b32 v20, 128")
    e("    v_mov_b32 v21, s26")
    e("    global_store_byte v20, v21, s[10:11] sc0 sc1")
    e("    s_mov_b64 exec, -1")
    e("    s_branch L_flagged")
    if force < 0:
        e("L_poll:                                        ; fresh reads of the votes and of the flag")
        e("    s_mov_b64 exec, 0x1ffff")
        e(f"    global_load_ubyte v21, v23, s[10:11]{sp(pol)}")
        e("    s_add_u32 s49, s49, 1")
        e("    s_waitcnt vmcnt(0)")
        e("    v_readlane_b32 s26, v21, 16")
        e("    v_cmp_eq_u32 vcc, 1, v21")
        e("    v_cmp_eq_u32 s[58:59], 2, v21")
        e("    s_mov_b64 exec, -1")
        e("    s_cmp_lg_u32 s26, 0")
        e("    s_cbranch_scc1 L_flagged")
        e("    s_bcnt1_i32_b64 s44, vcc")
        e("    s_bcnt1_i32_b64 s58, s[58:59]")
        e("    s_absdiff_i32 s59, s58, s44")
        e("    s_cmp_ge_u32 s59, s7")
        e("    s_cbranch_scc1 L_decided")
        e("    s_add_u32 s59, s58, s44")
        e("    s_lshr_b32 s59, s59, 4")
        e("    s_cmp_gt_u32 s59, s8")
        e("    s_cbranch_scc1 L_decided")
        e(f"    s_cmp_lt_u32 s49, {PMAX}")
        e("    s_cbranch_scc1 L_poll")
        e("    s_branch L_decided")
    e("L_slow:")
    e("    s_cmp_lg_u32 s6, 0")
    e("    s_cbranch_scc1 L_fin")
    e("    v_mov_b32 v20, 128")
    e("    global_load_ubyte v21, v20, s[10:11] sc0 sc1")
    e("    s_waitcnt vmcnt(0)")
    e("    v_readfirstlane_b32 s27, v21")
    if diag:
        e("    s_mov_b32 s62, 1")
    e("    s_nop 1")
    e("    s_cmp_eq_u32 s27, s26")
    e("    s_cbranch_scc1 L_fin")
    if diag:
        e("    s_mov_b32 s62, 2")
    e("    s_xor_b32 s26, s26, 3")
    e("    s_mov_b32 s6, 4")
    for r in range(S): load(r)
    e("    s_branch L_flagged")
    nv = A + U
    acc = (nv + 3) // 4 * 4
    e('.section .rodata,"a"')
    e(".p2align 6")
    e(f".amdhsa_kernel {NAME}_kernel")
    e(f"  .amdhsa_next_free_vgpr {nv}")
    e(f"  .amdhsa_next_free_sgpr {72 if diag else 60}")
    e(f"  .amdhsa_accum_offset {acc}")
    e("  .amdhsa_group_segment_fixed_size 0")
    e("  .amdhsa_kernarg_size 40")
    e("  .amdhsa_user_sgpr_count 2")
    e("  .amdhsa_user_sgpr_kernarg_segment_ptr 1")
    e("  .amdhsa_system_sgpr_workgroup_id_x 1")
    e("  .amdhsa_float_denorm_mode_32 3")
    e(".end_amdhsa_kernel")
    return "\n".join(o) + "\n"

if __name__ == "__main__":
    kw = {}
    out = sys.argv[1]
    for a in sys.argv[2:]:
        k, v = a.split("=")
        kw[k] = int(v) if v.lstrip("-").isdigit() else v.replace("+", " ")
    open(out, "w").write(gen(**kw))
```

```python
import sys, math
from gen1 import HEADER, NAME, ROWS, NBYTES

def gen(R=16, T=512, D=2, U=4, K=0, M=5, LM=None, DELTA=0, PMAX=40, ldp="nt", stp="sc1", pp="nt", pol="sc1",
        diag=0, force=-1, lds=0, exact=0, prio=0, HM=0x5bd1e995, lastp=0, chaos=0):
    W = T // 64
    S = D + 1 + K
    assert W in (8, 16) and R % U == 0 and D <= U - 1 and D <= 3 and K + 1 <= U - 1
    nwg = ROWS // (W * R)
    assert nwg == 256
    span = W * R * 2048
    lgspan = int(math.log2(span))
    stride = W * 2048
    if LM is None: LM = M
    o = []; e = o.append
    sp = lambda p: (" " + p) if p else ""
    e(HEADER.rstrip())
    e(f"; @launch grid=({nwg},1,1) block=({T},1,1) lds={lds}")
    e('.amdgcn_target "amdgcn-amd-amdhsa--gfx950"')
    e(".text")
    e(f".globl {NAME}_kernel")
    e(".p2align 8")
    e(f".type {NAME}_kernel,@function")
    e(f"{NAME}_kernel:")
    SX, SG, SO = 12, 16, 28
    if diag:
        e("    s_memrealtime s[50:51]")
        e("    s_load_dwordx2 s[64:65], s[0:1], 32")
    if force < 0:
        e("    s_memrealtime s[40:41]")
    e(f"    s_load_dwordx2 s[{SX}:{SX+1}], s[0:1], 0         ; x")
    e(f"    s_load_dwordx2 s[{SG}:{SG+1}], s[0:1], 8         ; g")
    e(f"    s_load_dwordx2 s[{SO}:{SO+1}], s[0:1], 16        ; out")
    e("    s_load_dwordx2 s[10:11], s[0:1], 24        ; debug")
    e(f"    s_cmp_ge_u32 s2, {nwg}")
    e("    s_cbranch_scc1 L_done")
    e("    v_lshrrev_b32 v2, 6, v0                   ; wave")
    e("    v_lshlrev_b32 v1, 4, v0")
    e("    v_readfirstlane_b32 s3, v2")
    e("    v_and_b32 v1, 0x3f0, v1                   ; lane*16")
    e("    s_lshr_b32 s48, s2, 3                     ; index among the workgroups with equal id % 8")
    e("    s_and_b32 s22, s2, 3")
    e("    s_lshl2_add_u32 s21, s48, s22")
    e(f"    s_lshl_b32 s21, s21, {lgspan}")
    if W > 8:
        e("    v_and_b32 v4, 7, v2")
        e("    v_lshrrev_b32 v2, 3, v2")
        e("    v_lshl_add_u32 v4, v4, 10, v1")
        e("    v_lshl_add_u32 v2, v2, 14, v4")
    else:
        e("    v_lshl_add_u32 v2, v2, 10, v1")
    X = 24
    GP = X + 4 * U
    A = GP + 4
    e("    s_lshr_b32 s23, s2, 2")
    e("    s_xor_b32 s23, s23, s3")
    e("    s_and_b32 s23, s23, 1")
    e("    s_lshl_b32 s49, s23, 13")
    e("    s_or_b32 s49, s49, s21")
    e(f"    v_add_u32 v{A}, s49, v2")
    for r in range(1, D):
        e(f"    v_add_u32 v{A+r}, {stride}, v{A+r-1}")
    e("    s_lshr_b32 s22, s21, 21                   ; page")
    e("    s_xor_b32 s9, s22, s3")
    e(f"    s_mov_b32 s{SX+2}, {NBYTES}")
    e(f"    s_mov_b32 s{SX+3}, 0x00020000")
    e(f"    s_mov_b32 s{SG+2}, 1024")
    e(f"    s_mov_b32 s{SG+3}, 0x00020000")
    e(f"    s_mov_b32 s{SO+2}, s{SX+2}")
    e(f"    s_mov_b32 s{SO+3}, 0x00020000")
    e("    s_mov_b32 s20, 0xffff0000")
    e("    s_mov_b32 s6, 0")
    e("    v_mov_b32 v3, 0x358637bd                  ; eps = 1e-6")
    e("    v_bfrev_b32 v22, 2")
    e("    s_or_b32 s8, s2, s3")
    if force < 0:
        if LM != M: e(f"    s_cselect_b32 s7, {M}, {LM}")
        e("    s_getreg_b32 s27, hwreg(HW_REG_XCC_ID, 0, 3)")
        e("    s_lshl_b32 s45, s27, 4")
        e("    s_lshr_b32 s27, s27, 2")
        e("    s_xor_b32 s27, s27, s22")
        e("    s_xor_b32 s27, s27, s48")
        e("    s_and_b32 s46, s48, 1")
        e("    s_lshl_b32 s46, s46, 13")
        e("    s_lshl_b32 s47, s22, 21")
        e("    s_or_b32 s46, s46, s47")
        e(f"    s_mul_i32 s47, s2, {HM}")
        e("    s_add_u32 s44, s45, s48")
        e("    v_mov_b32 v20, s44")
    if prio:
        e(f"    s_cmp_lt_u32 s3, {W // 2}")
        e("    s_cbranch_scc1 L_noprio")
        e("    s_setprio 1")
        e("L_noprio:")
    if diag:
        e("    s_mov_b32 s54, 0")
        e("    s_mov_b32 s55, 0")
        e("    s_mov_b32 s62, 0")
    e(f"    s_mov_b32 s4, {R // U}")
    e("    s_lshr_b32 s49, s48, 4")
    e("    s_or_b32 s36, s49, s3")
    e("    s_waitcnt lgkmcnt(0)")
    def load(b):
        e(f"    buffer_load_dwordx4 v[{X+4*b}:{X+4*b+3}], v{A+b}, s[{SX}:{SX+3}], 0 offen{sp(ldp)}")
    def dummy():
        e(f"    buffer_load_ubyte v5, v22, s[{SG}:{SG+3}], 0 offen")
    if force < 0:
        e("    s_cbranch_scc1 L_noprobe")
        e("    s_xor_b32 s40, s40, s47")
        e("    s_mul_i32 s40, s40, 0x9e3779b1")
        e("    s_lshr_b32 s40, s40, 11")
        e("    s_and_b32 s40, s40, 0x1fdf80")
        e("    s_or_b32 s46, s46, s40")
        e("    v_mov_b32 v16, s46")
        e("    v_xor_b32 v17, 0x2000, v16")
        e("    s_mov_b64 exec, 1")
        e(f"    buffer_load_dword v18, v16, s[{SX}:{SX+3}], 0 offen{sp(pp)}")
        e(f"    buffer_load_dword v19, v17, s[{SX}:{SX+3}], 0 offen{sp(pp)}")
        e("    s_mov_b64 exec, -1")
        e("L_noprobe:")
        e("    s_barrier")
    load(0)
    e(f"    buffer_load_dwordx4 v[{GP}:{GP+3}], v1, s[{SG}:{SG+3}], 0 offen")
    for r in range(1, D):
        load(r); dummy()
    n0 = 2 * D
    if force < 0:
        e("    s_cmp_lg_u32 s36, 0")
        e("    s_cbranch_scc1 L_novote")
        e("    s_mov_b64 exec, 1")
        e(f"    global_load_ubyte v5, v20, s[10:11]{sp(pol)}")
        e(f"    s_waitcnt vmcnt({n0 + 2})")
        for i in range(DELTA):
            e("    s_nop 7")
        e("    s_getreg_b32 s44, hwreg(HW_REG_IB_STS, 0, 4)")
        e(f"    s_cmp_le_u32 s44, {n0 + 1}")
        e("    s_addc_u32 s44, s27, 0")
        if chaos:
            e("    s_lshr_b32 s44, s40, 9")
        e("    s_and_b32 s44, s44, 1")
        e("    s_add_u32 s44, s44, 1")
        e("    v_mov_b32 v16, s44")
        e("    global_store_byte v20, v16, s[10:11]")
        e("    s_mov_b64 exec, -1")
        if diag:
            e("    s_mov_b32 s54, s44")
            e("    s_memrealtime s[56:57]")
            e("    s_waitcnt lgkmcnt(0)")
            e("    s_mov_b32 s55, s56")
        e(f"    s_waitcnt vmcnt({n0})")
        e("    s_branch L_voted")
        e("L_novote:")
    e(f"    s_waitcnt vmcnt({n0 - 2})")
    e("L_voted:")
    for i in range(4):
        e(f"    v_lshlrev_b32 v{8+2*i}, 16, v{GP+i}")
        e(f"    v_and_b32 v{9+2*i}, s20, v{GP+i}")
    def row(b, step, last):
        nb = (b + D) % U; pb = (b + D - 1) % U
        d = X + 4 * b
        e(f"    v_add_u32 v{A+nb}, {step}, v{A+pb}")
        e(f"    s_waitcnt vmcnt({2 * D - 1})")
        load(nb)
        pr = [16, 18, 20, 6]
        un = []
        for i in range(4):
            un.append(f"    v_lshlrev_b32 v{pr[i]}, 16, v{d+i}")
            un.append(f"    v_and_b32 v{pr[i]+1}, s20, v{d+i}")
        dpp = lambda m: e(f"    v_add_f32_dpp v4, v4, v4 {m} bank_mask:0xf")
        if exact < 2:
            e(f"    v_dot2_f32_bf16 v4, v{d}, v{d}, 0")
            for i in range(1, 4):
                e(f"    v_dot2_f32_bf16 v4, v{d+i}, v{d+i}, v4")
            e(un[0]); e(un[1]); e(un[2])
            dpp("quad_perm:[1,0,3,2] row_mask:0xf")
            e(un[3]); e(un[4])
            dpp("quad_perm:[2,3,0,1] row_mask:0xf")
            e(un[5]); e(un[6])
            dpp("row_half_mirror row_mask:0xf")
            e(un[7]); e("    s_nop 0")
        else:
            for u in un: e(u)
            Q = A + U + (A + U) % 2
            for i in range(4):
                e(f"    v_pk_mul_f32 v[{Q+2*(i%2)}:{Q+1+2*(i%2)}], v[{pr[i]}:{pr[i]+1}], v[{pr[i]}:{pr[i]+1}]")
                if i >= 1:
                    j = i - 1
                    e(f"    v_cvt_pk_bf16_f32 v{d+j}, v{Q+2*(j%2)}, v{Q+1+2*(j%2)}")
            e(f"    v_cvt_pk_bf16_f32 v{d+3}, v{Q+2}, v{Q+3}")
            e(f"    v_dot2_f32_bf16 v4, v{d}, s21, 0")
            for i in range(1, 4):
                e(f"    v_dot2_f32_bf16 v4, v{d+i}, s21, v4")
            e("    s_nop 2")
            dpp("quad_perm:[1,0,3,2] row_mask:0xf")
            e("    s_nop 1")
            dpp("quad_perm:[2,3,0,1] row_mask:0xf")
            e("    s_nop 1")
            dpp("row_half_mirror row_mask:0xf")
            e("    s_nop 1")
        dpp("row_mirror row_mask:0xf")
        e("    s_nop 1")
        dpp("row_bcast:15 row_mask:0xa")
        e("    s_nop 1")
        dpp("row_bcast:31 row_mask:0xc")
        if exact:
            e("    v_cvt_pk_bf16_f32 v4, 0, v4")
            e("    v_fmamk_f32 v4, v4, 0x3b000000, v3        ; + eps")
            e("    v_cvt_pk_bf16_f32 v4, 0, v4")
            e("    v_sqrt_f32 v4, v4")
            e("    s_nop 0")
            e("    v_cvt_pk_bf16_f32 v4, 0, v4")
            e("    v_rcp_f32 v4, v4")
        else:
            e("    v_fmamk_f32 v4, v4, 0x3b000000, v3")
            e("    v_rsq_f32 v4, v4")
        e("    s_nop 0")
        e("    v_readlane_b32 s24, v4, 63")
        e("    s_nop 1")
        for i in range(4):
            e(f"    v_pk_mul_f32 v[{pr[i]}:{pr[i]+1}], v[{pr[i]}:{pr[i]+1}], s[24:25] op_sel_hi:[1,0]")
        for i in range(4):
            e(f"    v_pk_mul_f32 v[{pr[i]}:{pr[i]+1}], v[{pr[i]}:{pr[i]+1}], v[{8+2*i}:{9+2*i}]")
        for i in range(4):
            e(f"    v_cvt_pk_bf16_f32 v{d+i}, v{pr[i]}, v{pr[i]+1}")
        e(f"    buffer_store_dwordx4 v[{d}:{d+3}], v{A+b}, s[{SO}:{SO+3}], 0 offen{sp(stp)}")
    if exact == 2:
        e("    s_mov_b32 s21, 0x3f803f80                 ; bf16 (1, 1)")
    e("L_loop:")
    e("    s_sub_u32 s4, s4, 1")
    e("    s_cmp_eq_u32 s4, 0")
    e("    s_cselect_b32 s5, 0x40000000, 0")
    e(f"    s_or_b32 s5, s5, {stride}")
    e(f"    s_mov_b32 s38, {'s5' if K + 1 >= U - D else stride}")
    for b in range(U):
        row(b, "s38" if b == K + 1 else ("s5" if b >= U - D else str(stride)), False)
        if b == K:
            e("    s_cmp_eq_u32 s6, 0")
            e("    s_cbranch_scc1 L_decide")
            e("L_next:")
    e("    s_cmp_lg_u32 s4, 0")
    e("    s_cbranch_scc1 L_loop")
    e("    s_load_dword s27, s[10:11], 128")
    e("    s_waitcnt lgkmcnt(0)")
    e("    s_cmp_eq_u32 s27, s26")
    e("    s_cbranch_scc0 L_slow")
    e("L_fin:")
    if diag:
        e(f"""    s_waitcnt vmcnt(0)
    s_memrealtime s[60:61]
    s_mov_b32 s66, 0x1000000
    s_mov_b32 s67, 0x00020000
    s_getreg_b32 s70, hwreg(HW_REG_XCC_ID)
    s_getreg_b32 s71, hwreg(HW_REG_HW_ID)
    s_and_b32 s70, s70, 15
    s_lshl_b32 s70, s70, 24
    s_and_b32 s71, s71, 0xffffff
    s_or_b32 s70, s70, s71
    s_mul_i32 s68, s2, {W}
    s_add_u32 s68, s68, s3
    s_lshl_b32 s68, s68, 5
    s_cmp_eq_u32 s62, 2
    s_cselect_b32 s69, 3, 0
    s_xor_b32 s26, s26, s69
    s_waitcnt lgkmcnt(0)
    v_mov_b32 v4, s50
    v_mov_b32 v5, s52
    v_mov_b32 v6, s60
    v_mov_b32 v7, s26
    v_mov_b32 v8, s54
    v_mov_b32 v9, s55
    v_mov_b32 v10, s62
    v_mov_b32 v11, s70
    v_mov_b32 v12, s68
    s_mov_b64 exec, 1
    buffer_store_dwordx4 v[4:7], v12, s[64:67], 0 offen
    buffer_store_dwordx4 v[8:11], v12, s[64:67], 0 offen offset:16""")
    e("L_done:")
    e("    s_endpgm")
    e("L_decide:")
    mreg = "s7" if LM != M else str(M)
    if force < 0:
        e("    s_load_dwordx4 s[40:43], s[10:11], s45")
        e("    s_mov_b32 s49, 0")
        e("    s_mov_b32 s46, 0x01010101")
        e("    s_mov_b32 s47, s46")
        e("    s_waitcnt lgkmcnt(0)")
        e("    s_bcnt1_i32_b64 s26, s[40:41]")
        e("    s_bcnt1_i32_b64 s58, s[42:43]")
        e("    s_and_b64 s[40:41], s[40:41], s[46:47]")
        e("    s_and_b64 s[42:43], s[42:43], s[46:47]")
        e("    s_add_u32 s58, s58, s26")
        e("    s_bcnt1_i32_b64 s44, s[40:41]")
        e("    s_bcnt1_i32_b64 s26, s[42:43]")
        e("    s_add_u32 s44, s44, s26")
        e("    s_sub_u32 s58, s58, s44")
        e("    s_absdiff_i32 s59, s58, s44")
        e(f"    s_cmp_lt_u32 s59, {mreg}")
        e("    s_cbranch_scc1 L_poll0")
        e("L_decided:")
        if diag:
            e("    s_add_u32 s49, s49, 1")
            e("    s_lshl_b32 s49, s49, 8")
            e("    s_or_b32 s54, s54, s49")
            e("    s_lshl_b32 s49, s44, 16")
            e("    s_or_b32 s54, s54, s49")
            e("    s_lshl_b32 s49, s58, 24")
            e("    s_or_b32 s54, s54, s49")
        e("    s_cmp_gt_u32 s58, s44")
        e("    s_cselect_b32 s26, 2, 1                   ; G + 1")
    else:
        e(f"    s_mov_b32 s26, {force + 1}")
    e("    s_cmp_eq_u32 s8, 0")
    e("    s_cbranch_scc1 L_publish")
    e("L_flagged:")
    e("    s_add_u32 s44, s26, s9")
    e("    s_andn2_b32 s44, 1, s44")
    e("    s_xor_b32 s44, s44, s23")
    e("    s_sub_u32 s49, s44, s23")
    e("    s_lshl_b32 s49, s49, 13")
    e("    s_add_u32 s38, s38, s49")
    e("    s_mov_b32 s6, 1")
    if diag:
        e("    s_memrealtime s[52:53]")
    e("    s_branch L_next")
    e("L_publish:")
    e("    s_mov_b64 exec, 1")
    e("    v_mov_b32 v20, 128")
    e("    v_mov_b32 v21, s26")
    e("    global_store_byte v20, v21, s[10:11] sc0 sc1")
    e("    s_mov_b64 exec, -1")
    e("    s_branch L_flagged")
    if force < 0:
        e("L_poll0:                                       ; fresh reads of the votes (lanes 0-15) and of the flag (lane 16)")
        e("    v_lshrrev_b32 v20, 4, v1")
        e("    v_add_u32 v20, s45, v20")
        e("    s_mov_b64 exec, 0x10000")
        e("    v_mov_b32 v20, 128")
        e("L_poll:")
        e("    s_mov_b64 exec, 0x1ffff")
        e(f"    global_load_ubyte v21, v20, s[10:11]{sp(pol)}")
        e("    s_add_u32 s49, s49, 1")
        e("    s_waitcnt vmcnt(0)")
        e("    v_readlane_b32 s26, v21, 16")
        e("    v_cmp_eq_u32 vcc, 1, v21")
        e("    v_cmp_eq_u32 s[58:59], 2, v21")
        e("    s_mov_b64 exec, -1")
        e("    s_cmp_lg_u32 s26, 0")
        e("    s_cbranch_scc1 L_flagged")
        e("    s_bcnt1_i32_b64 s44, vcc")
        e("    s_bcnt1_i32_b64 s58, s[58:59]")
        e("    s_absdiff_i32 s59, s58, s44")
        e(f"    s_cmp_ge_u32 s59, {mreg}")
        e("    s_cbranch_scc1 L_decided")
        e("    s_add_u32 s59, s58, s44")
        e("    s_lshr_b32 s59, s59, 4")
        e("    s_cmp_gt_u32 s59, s8")
        e("    s_cbranch_scc1 L_decided")
        e(f"    s_cmp_lt_u32 s49, {PMAX}")
        e("    s_cbranch_scc1 L_poll")
        e("    s_branch L_decided")
    e("L_slow:")
    e("    s_cmp_eq_u32 s6, 2")
    e("    s_cbranch_scc1 L_fin")
    e("    v_mov_b32 v20, 128")
    e("    global_load_ubyte v21, v20, s[10:11] sc0 sc1")
    e("    s_waitcnt vmcnt(0)")
    e("    v_readfirstlane_b32 s27, v21")
    if diag:
        e("    s_mov_b32 s62, 1")
    e("    s_nop 1")
    e("    s_cmp_eq_u32 s27, s26")
    e("    s_cbranch_scc1 L_fin")
    if diag:
        e("    s_mov_b32 s62, 2")
    e("    s_xor_b32 s26, s26, 3")
    e("    s_mov_b32 s6, 2")
    e(f"    s_mov_b32 s4, {R // U}")
    e(f"    v_xor_b32 v{A}, 0x2000, v{A+U-1}")
    e(f"    v_subrev_u32 v{A}, {(R - 1) * stride}, v{A}")
    for r in range(D):
        if r: e(f"    v_add_u32 v{A+r}, {stride}, v{A+r-1}")
        load(r); dummy()
    e("    s_branch L_loop")
    nv = A + U + ((A + U) % 2 + 4 if exact == 2 else 0)
    acc = (nv + 3) // 4 * 4
    e('.section .rodata,"a"')
    e(".p2align 6")
    e(f".amdhsa_kernel {NAME}_kernel")
    e(f"  .amdhsa_next_free_vgpr {nv}")
    e(f"  .amdhsa_next_free_sgpr {72 if diag else 60}")
    e(f"  .amdhsa_accum_offset {acc}")
    e("  .amdhsa_group_segment_fixed_size 0")
    e("  .amdhsa_kernarg_size 40")
    e("  .amdhsa_user_sgpr_count 2")
    e("  .amdhsa_user_sgpr_kernarg_segment_ptr 1")
    e("  .amdhsa_system_sgpr_workgroup_id_x 1")
    e("  .amdhsa_float_denorm_mode_32 3")
    e(".end_amdhsa_kernel")
    return "\n".join(o) + "\n"

if __name__ == "__main__":
    kw = {}
    out = sys.argv[1]
    for a in sys.argv[2:]:
        k, v = a.split("=")
        kw[k] = int(v) if v.lstrip("-").isdigit() else v.replace("+", " ")
    open(out, "w").write(gen(**kw))
```

```python
import sys, math
from gen1 import HEADER, NAME, ROWS, NBYTES

def gen(R=16, T=512, D=2, U=4, K=0, M=5, LM=None, DELTA=0, PMAX=40, ldp="nt", stp="sc1", pp="nt", pol="sc1",
        diag=0, force=-1, lds=0, exact=0, prio=0, HM=0x5bd1e995, lastp=0, lstp="", chaos=0, PFE=1, CPF=0, SW=0, LT=0, EA=0, LAY=0):
    W = T // 64
    S = D + 1 + K
    assert W in (8, 16) and R % U == 0 and D <= U - 1 and D <= 3 and K + 1 <= U - 1
    nwg = ROWS // (W * R)
    assert nwg == 256
    span = W * R * 2048
    lgspan = int(math.log2(span))
    stride = W * 2048
    if LM is None: LM = M
    o = []; e = o.append
    sp = lambda p: (" " + p) if p else ""
    e(HEADER.rstrip())
    e(f"; @launch grid=({nwg},1,1) block=({T},1,1) lds={lds}")
    e('.amdgcn_target "amdgcn-amd-amdhsa--gfx950"')
    e(".text")
    e(f".globl {NAME}_kernel")
    e(".p2align 8")
    e(f".type {NAME}_kernel,@function")
    e(f"{NAME}_kernel:")
    SX, SG, SO = 12, 16, 28
    if diag:
        e("    s_memrealtime s[50:51]")
        e("    s_load_dwordx2 s[64:65], s[0:1], 32")
    if force < 0:
        e("    s_memrealtime s[40:41]")
    e(f"    s_load_dwordx2 s[{SX}:{SX+1}], s[0:1], 0         ; x")
    e(f"    s_load_dwordx2 s[{SG}:{SG+1}], s[0:1], 8         ; g")
    e(f"    s_load_dwordx2 s[{SO}:{SO+1}], s[0:1], 16        ; out")
    e("    s_load_dwordx2 s[10:11], s[0:1], 24        ; debug")
    e(f"    s_cmp_ge_u32 s2, {nwg}")
    e("    s_cbranch_scc1 L_done")
    e("    v_lshrrev_b32 v2, 6, v0                   ; wave")
    e("    v_lshlrev_b32 v1, 4, v0")
    e("    v_readfirstlane_b32 s3, v2")
    e("    v_and_b32 v1, 0x3f0, v1                   ; lane*16")
    if CPF:
        if CPF == 2:
            e("    s_cmp_lt_u32 s2, 128")
            e("    s_cbranch_scc1 L_nopf")
        e("    s_cmp_lg_u32 s3, 1")
        e("    s_cbranch_scc1 L_nopf")
        e("    s_getpc_b64 s[42:43]")
        e("L_pc:")
        e("    v_lshlrev_b32 v6, 3, v1")
        e("    v_mov_b32 v7, s43")
        e("    v_add_co_u32 v6, vcc, s42, v6")
        e("    s_mov_b32 exec_hi, 0")
        e("    s_mov_b32 exec_lo, (1 << ((L_end - L_pc - 1) >> 7)) - 1")
        e("    v_addc_co_u32 v7, vcc, 0, v7, vcc")
        e("    global_load_ubyte v5, v[6:7], off offset:128")
        e("    s_mov_b64 exec, -1")
        e("L_nopf:")
    e("    s_lshr_b32 s48, s2, 3                     ; index among the workgroups with equal id % 8")
    e("    s_and_b32 s22, s2, 3")
    e("    s_lshl2_add_u32 s21, s48, s22")
    e(f"    s_lshl_b32 s21, s21, {lgspan}")
    if W > 8:
        e("    v_and_b32 v4, 7, v2")
        e("    v_lshrrev_b32 v2, 3, v2")
        e("    v_lshl_add_u32 v4, v4, 10, v1")
        e("    v_lshl_add_u32 v2, v2, 14, v4")
    else:
        e("    v_lshl_add_u32 v2, v2, 10, v1")
    X = 24
    GP = X + 4 * U
    A = GP + 4
    e("    s_lshr_b32 s23, s2, 2")
    e("    s_xor_b32 s23, s23, s3")
    e("    s_and_b32 s23, s23, 1")
    e("    s_lshl_b32 s49, s23, 13")
    e("    s_or_b32 s49, s49, s21")
    e(f"    v_add_u32 v{A}, s49, v2")
    for r in range(1, D):
        e(f"    v_add_u32 v{A+r}, {stride}, v{A+r-1}")
    e("    s_lshr_b32 s22, s21, 21                   ; page")
    e("    s_xor_b32 s9, s22, s3")
    e(f"    s_mov_b32 s{SX+2}, {NBYTES}")
    e(f"    s_mov_b32 s{SX+3}, 0x00020000")
    e(f"    s_mov_b32 s{SG+2}, 1024")
    e(f"    s_mov_b32 s{SG+3}, 0x00020000")
    e(f"    s_mov_b32 s{SO+2}, s{SX+2}")
    e(f"    s_mov_b32 s{SO+3}, 0x00020000")
    e("    s_mov_b32 s20, 0xffff0000")
    e("    s_mov_b32 s6, 0")
    e("    v_mov_b32 v3, 0x358637bd                  ; eps = 1e-6")
    e("    v_bfrev_b32 v22, 2")
    e("    s_or_b32 s8, s2, s3")
    if force < 0:
        if LM != M: e(f"    s_cselect_b32 s7, {M}, {LM}")
        e("    s_getreg_b32 s27, hwreg(HW_REG_XCC_ID, 0, 3)")
        e("    s_lshl_b32 s45, s27, 4")
        e("    s_lshr_b32 s27, s27, 2")
        e("    s_xor_b32 s27, s27, s22")
        e("    s_xor_b32 s27, s27, s48")
        e("    s_and_b32 s46, s48, 1")
        e("    s_lshl_b32 s46, s46, 13")
        e("    s_lshl_b32 s47, s22, 21")
        e("    s_or_b32 s46, s46, s47")
        e(f"    s_mul_i32 s47, s2, {HM}")
        e("    s_add_u32 s44, s45, s48")
        e("    v_mov_b32 v20, s44")
    if prio:
        e(f"    s_cmp_lt_u32 s3, {W // 2}")
        e("    s_cbranch_scc1 L_noprio")
        e("    s_setprio 1")
        e("L_noprio:")
    if diag:
        e("    s_mov_b32 s54, 0")
        e("    s_mov_b32 s55, 0")
        e("    s_mov_b32 s62, 0")
    e(f"    s_mov_b32 s4, {R // U}")
    e("    s_lshr_b32 s49, s48, 4")
    e("    s_or_b32 s36, s49, s3")
    e("    s_waitcnt lgkmcnt(0)")
    def load(b):
        e(f"    buffer_load_dwordx4 v[{X+4*b}:{X+4*b+3}], v{A+b}, s[{SX}:{SX+3}], 0 offen{sp(ldp)}")
    def dummy():
        e(f"    buffer_load_ubyte v5, v22, s[{SG}:{SG+3}], 0 offen")
    if force < 0:
        e("    s_cbranch_scc1 L_noprobe")
        e("    s_xor_b32 s40, s40, s47")
        e("    s_mul_i32 s40, s40, 0x9e3779b1")
        e("    s_lshr_b32 s40, s40, 11")
        e("    s_and_b32 s40, s40, 0x1fdf80")
        e("    s_or_b32 s46, s46, s40")
        e("    v_mov_b32 v16, s46")
        e("    v_xor_b32 v17, 0x2000, v16")
        e("    s_mov_b64 exec, 1")
        e(f"    buffer_load_dword v18, v16, s[{SX}:{SX+3}], 0 offen{sp(pp)}")
        e(f"    buffer_load_dword v19, v17, s[{SX}:{SX+3}], 0 offen{sp(pp)}")
        if PFE:
            e(f"    global_load_ubyte v5, v20, s[10:11]{sp(pol)}")
        e("    s_mov_b64 exec, -1")
        e("L_noprobe:")
        e("    s_barrier")
    def vote(n):
        e(f"    s_waitcnt vmcnt({n + 1})")
        for i in range(DELTA):
            e("    s_nop 7")
        e("    s_getreg_b32 s44, hwreg(HW_REG_IB_STS, 0, 4)")
        e(f"    s_cmp_le_u32 s44, {n}")
        e("    s_addc_u32 s44, s27, 0")
        if chaos:
            e("    s_lshr_b32 s44, s40, 9")
        e("    s_and_b32 s44, s44, 1")
        e("    s_add_u32 s44, s44, 1")
        e("    v_mov_b32 v16, s44")
        e("    global_store_byte v20, v16, s[10:11]")
        e("    s_mov_b64 exec, -1")
        if diag:
            e("    s_mov_b32 s54, s44")
            e("    s_memrealtime s[56:57]")
            e("    s_waitcnt lgkmcnt(0)")
            e("    s_mov_b32 s55, s56")
    n0 = 2 * D
    if LT and force < 0:
        assert PFE
        gl = lambda: e(f"    buffer_load_dwordx4 v[{GP}:{GP+3}], v1, s[{SG}:{SG+3}], 0 offen")
        e("    s_cmp_eq_u32 s36, 0")
        e("    s_cbranch_scc1 L_vote")
        load(0)
        if LT == 2: gl()
        e("    s_barrier")
        e("    s_branch L_rest")
        e("L_vote:")
        e("    s_mov_b64 exec, 1")
        vote(1)
        e("    s_barrier")
        load(0)
        if LT == 2: gl()
        e("L_rest:")
        if LT == 1: gl()
    else:
        load(0)
        e(f"    buffer_load_dwordx4 v[{GP}:{GP+3}], v1, s[{SG}:{SG+3}], 0 offen")
    for r in range(1, D):
        load(r); dummy()
    if force < 0 and not LT:
        e("    s_cmp_lg_u32 s36, 0")
        e("    s_cbranch_scc1 L_novote")
        e("    s_mov_b64 exec, 1")
        if not PFE:
            e(f"    global_load_ubyte v5, v20, s[10:11]{sp(pol)}")
        vote(n0 + 1)
        e(f"    s_waitcnt vmcnt({n0 - PFE})")
        e("    s_branch L_voted")
        e("L_novote:")
    e(f"    s_waitcnt vmcnt({n0 - 2})")
    e("L_voted:")
    for i in range(4):
        e(f"    v_lshlrev_b32 v{8+2*i}, 16, v{GP+i}")
        e(f"    v_and_b32 v{9+2*i}, s20, v{GP+i}")
    def row(b, step, last):
        nb = (b + D) % U; pb = (b + D - 1) % U
        d = X + 4 * b
        e(f"    v_add_u32 v{A+nb}, {step}, v{A+pb}")
        e(f"    s_waitcnt vmcnt({2 * D - 1})")
        load(nb)
        pr = [16, 18, 20, 6]
        un = []
        for i in range(4):
            un.append(f"    v_lshlrev_b32 v{pr[i]}, 16, v{d+i}")
            un.append(f"    v_and_b32 v{pr[i]+1}, s20, v{d+i}")
        dpp = lambda m: e(f"    v_add_f32_dpp v4, v4, v4 {m} bank_mask:0xf")
        if exact < 2:
            e(f"    v_dot2_f32_bf16 v4, v{d}, v{d}, 0")
            for i in range(1, 4):
                e(f"    v_dot2_f32_bf16 v4, v{d+i}, v{d+i}, v4")
            e(un[0]); e(un[1]); e(un[2])
            dpp("quad_perm:[1,0,3,2] row_mask:0xf")
            e(un[3]); e(un[4])
            dpp("quad_perm:[2,3,0,1] row_mask:0xf")
            e(un[5]); e(un[6])
            dpp("row_half_mirror row_mask:0xf")
            e(un[7]); e("    s_nop 0")
        else:
            for u in un: e(u)
            Q = A + U + (A + U) % 2
            for i in range(4):
                e(f"    v_pk_mul_f32 v[{Q+2*(i%2)}:{Q+1+2*(i%2)}], v[{pr[i]}:{pr[i]+1}], v[{pr[i]}:{pr[i]+1}]")
                if i >= 1:
                    j = i - 1
                    e(f"    v_cvt_pk_bf16_f32 v{d+j}, v{Q+2*(j%2)}, v{Q+1+2*(j%2)}")
            e(f"    v_cvt_pk_bf16_f32 v{d+3}, v{Q+2}, v{Q+3}")
            e(f"    v_dot2_f32_bf16 v4, v{d}, s21, 0")
            for i in range(1, 4):
                e(f"    v_dot2_f32_bf16 v4, v{d+i}, s21, v4")
            e("    s_nop 2")
            dpp("quad_perm:[1,0,3,2] row_mask:0xf")
            e("    s_nop 1")
            dpp("quad_perm:[2,3,0,1] row_mask:0xf")
            e("    s_nop 1")
            dpp("row_half_mirror row_mask:0xf")
            e("    s_nop 1")
        dpp("row_mirror row_mask:0xf")
        e("    s_nop 1")
        dpp("row_bcast:15 row_mask:0xa")
        e("    s_nop 1")
        dpp("row_bcast:31 row_mask:0xc")
        if exact:
            e("    v_cvt_pk_bf16_f32 v4, 0, v4")
            e("    v_fmamk_f32 v4, v4, 0x3b000000, v3        ; + eps")
            e("    v_cvt_pk_bf16_f32 v4, 0, v4")
            e("    v_sqrt_f32 v4, v4")
            e("    s_nop 0")
            e("    v_cvt_pk_bf16_f32 v4, 0, v4")
            e("    v_rcp_f32 v4, v4")
        else:
            e("    v_fmamk_f32 v4, v4, 0x3b000000, v3")
            e("    v_rsq_f32 v4, v4")
        e("    s_nop 0")
        e("    v_readlane_b32 s24, v4, 63")
        e("    s_nop 1")
        for i in range(4):
            e(f"    v_pk_mul_f32 v[{pr[i]}:{pr[i]+1}], v[{pr[i]}:{pr[i]+1}], s[24:25] op_sel_hi:[1,0]")
        for i in range(4):
            e(f"    v_pk_mul_f32 v[{pr[i]}:{pr[i]+1}], v[{pr[i]}:{pr[i]+1}], v[{8+2*i}:{9+2*i}]")
        for i in range(4):
            e(f"    v_cvt_pk_bf16_f32 v{d+i}, v{pr[i]}, v{pr[i]+1}")
        if b >= U - lastp:
            e("    s_cmp_eq_u32 s4, 0")
            e(f"    s_cbranch_scc1 L_last{b}")
        e(f"    buffer_store_dwordx4 v[{d}:{d+3}], v{A+b}, s[{SO}:{SO+3}], 0 offen{sp(stp)}")
        if b >= U - lastp:
            e(f"    s_branch L_join{b}" if b < U - 1 else "    s_branch L_loop")
            e(f"L_last{b}:")
            e(f"    buffer_store_dwordx4 v[{d}:{d+3}], v{A+b}, s[{SO}:{SO+3}], 0 offen{sp(lstp)}")
            e(f"L_join{b}:")
    if exact == 2:
        e("    s_mov_b32 s21, 0x3f803f80                 ; bf16 (1, 1)")
    e("L_loop:")
    e("    s_sub_u32 s4, s4, 1")
    e("    s_cmp_eq_u32 s4, 0")
    e("    s_cselect_b32 s5, 0x40000000, 0")
    e(f"    s_or_b32 s5, s5, {stride}")
    KB = K if EA else K + 1
    if EA:
        e("    s_cmp_eq_u32 s6, 0")
        if KB >= U - D:
            e("    s_cselect_b32 s38, 0x40000000, s5")
        else:
            e("    s_cselect_b32 s38, 0x40000000, 0")
            e(f"    s_or_b32 s38, s38, {stride}")
    else:
        e(f"    s_mov_b32 s38, {'s5' if KB >= U - D else stride}")
    for b in range(U):
        row(b, "s38" if b == KB else ("s5" if b >= U - D else str(stride)), False)
        if b == K:
            e("    s_cmp_eq_u32 s6, 0")
            e("    s_cbranch_scc1 L_decide")
            e("L_next:")
    if not lastp:
        e("    s_cmp_lg_u32 s4, 0")
        e("    s_cbranch_scc1 L_loop")
    e("    s_load_dword s27, s[10:11], 128")
    e("    s_waitcnt lgkmcnt(0)")
    e("    s_cmp_eq_u32 s27, s26")
    e("    s_cbranch_scc0 L_slow")
    e("L_fin:")
    if diag:
        e(f"""    s_waitcnt vmcnt(0)
    s_memrealtime s[60:61]
    s_mov_b32 s66, 0x1000000
    s_mov_b32 s67, 0x00020000
    s_getreg_b32 s70, hwreg(HW_REG_XCC_ID)
    s_getreg_b32 s71, hwreg(HW_REG_HW_ID)
    s_and_b32 s70, s70, 15
    s_lshl_b32 s70, s70, 24
    s_and_b32 s71, s71, 0xffffff
    s_or_b32 s70, s70, s71
    s_mul_i32 s68, s2, {W}
    s_add_u32 s68, s68, s3
    s_lshl_b32 s68, s68, 5
    s_cmp_eq_u32 s62, 2
    s_cselect_b32 s69, 3, 0
    s_xor_b32 s26, s26, s69
    s_waitcnt lgkmcnt(0)
    v_mov_b32 v4, s50
    v_mov_b32 v5, s52
    v_mov_b32 v6, s60
    v_mov_b32 v7, s26
    v_mov_b32 v8, s54
    v_mov_b32 v9, s55
    v_mov_b32 v10, s62
    v_mov_b32 v11, s70
    v_mov_b32 v12, s68
    s_mov_b64 exec, 1
    buffer_store_dwordx4 v[4:7], v12, s[64:67], 0 offen
    buffer_store_dwordx4 v[8:11], v12, s[64:67], 0 offen offset:16""")
    e("L_done:")
    e("    s_endpgm")
    e("L_decide:")
    mreg = "s7" if LM != M else str(M)
    if force < 0:
        if SW: e(f"    s_waitcnt vmcnt({2 * D - 1})")
        e("    s_load_dwordx4 s[40:43], s[10:11], s45")
        e("    s_mov_b32 s49, 0")
        e("    s_mov_b32 s46, 0x01010101")
        e("    s_mov_b32 s47, s46")
        e("    s_waitcnt lgkmcnt(0)")
        e("    s_bcnt1_i32_b64 s26, s[40:41]")
        e("    s_bcnt1_i32_b64 s58, s[42:43]")
        e("    s_and_b64 s[40:41], s[40:41], s[46:47]")
        e("    s_and_b64 s[42:43], s[42:43], s[46:47]")
        e("    s_add_u32 s58, s58, s26")
        e("    s_bcnt1_i32_b64 s44, s[40:41]")
        e("    s_bcnt1_i32_b64 s26, s[42:43]")
        e("    s_add_u32 s44, s44, s26")
        e("    s_sub_u32 s58, s58, s44")
        e("    s_absdiff_i32 s59, s58, s44")
        e(f"    s_cmp_lt_u32 s59, {mreg}")
        e("    s_cbranch_scc1 L_poll0")
        e("L_decided:")
        if diag:
            e("    s_add_u32 s49, s49, 1")
            e("    s_lshl_b32 s49, s49, 8")
            e("    s_or_b32 s54, s54, s49")
            e("    s_lshl_b32 s49, s44, 16")
            e("    s_or_b32 s54, s54, s49")
            e("    s_lshl_b32 s49, s58, 24")
            e("    s_or_b32 s54, s54, s49")
        e("    s_cmp_gt_u32 s58, s44")
        e("    s_cselect_b32 s26, 2, 1                   ; G + 1")
    else:
        e(f"    s_mov_b32 s26, {force + 1}")
    e("    s_cmp_eq_u32 s8, 0")
    e("    s_cbranch_scc1 L_publish")
    e("L_flagged:")
    e("    s_add_u32 s44, s26, s9")
    e("    s_andn2_b32 s44, 1, s44")
    e("    s_xor_b32 s44, s44, s23")
    e("    s_sub_u32 s49, s44, s23")
    e("    s_lshl_b32 s49, s49, 13")
    if EA:
        e(f"    s_add_u32 s49, s49, {stride}")
        e(f"    v_add_u32 v{A + (K + D) % U}, s49, v{A + (K + D - 1) % U}")
        load((K + D) % U); dummy()
    else:
        e("    s_add_u32 s38, s38, s49")
    e("    s_mov_b32 s6, 1")
    if diag:
        e("    s_memrealtime s[52:53]")
    e("    s_branch L_next")
    e("L_publish:")
    e("    s_mov_b64 exec, 1")
    e("    v_mov_b32 v20, 128")
    e("    v_mov_b32 v21, s26")
    e("    global_store_byte v20, v21, s[10:11] sc0 sc1")
    e("    s_mov_b64 exec, -1")
    e("    s_branch L_flagged")
    if force < 0:
        e("L_poll0:                                       ; fresh reads of the votes (lanes 0-15) and of the flag (lane 16)")
        e("    v_lshrrev_b32 v20, 4, v1")
        e("    v_add_u32 v20, s45, v20")
        e("    s_mov_b64 exec, 0x10000")
        e("    v_mov_b32 v20, 128")
        e("L_poll:")
        e("    s_mov_b64 exec, 0x1ffff")
        e(f"    global_load_ubyte v21, v20, s[10:11]{sp(pol)}")
        e("    s_add_u32 s49, s49, 1")
        e("    s_waitcnt vmcnt(0)")
        e("    v_readlane_b32 s26, v21, 16")
        e("    v_cmp_eq_u32 vcc, 1, v21")
        e("    v_cmp_eq_u32 s[58:59], 2, v21")
        e("    s_mov_b64 exec, -1")
        e("    s_cmp_lg_u32 s26, 0")
        e("    s_cbranch_scc1 L_flagged")
        e("    s_bcnt1_i32_b64 s44, vcc")
        e("    s_bcnt1_i32_b64 s58, s[58:59]")
        e("    s_absdiff_i32 s59, s58, s44")
        e(f"    s_cmp_ge_u32 s59, {mreg}")
        e("    s_cbranch_scc1 L_decided")
        e("    s_add_u32 s59, s58, s44")
        e("    s_lshr_b32 s59, s59, 4")
        e("    s_cmp_gt_u32 s59, s8")
        e("    s_cbranch_scc1 L_decided")
        e(f"    s_cmp_lt_u32 s49, {PMAX}")
        e("    s_cbranch_scc1 L_poll")
        e("    s_branch L_decided")
    e("L_slow:")
    e("    s_cmp_eq_u32 s6, 2")
    e("    s_cbranch_scc1 L_fin")
    e("    v_mov_b32 v20, 128")
    e("    global_load_ubyte v21, v20, s[10:11] sc0 sc1")
    e("    s_waitcnt vmcnt(0)")
    e("    v_readfirstlane_b32 s27, v21")
    if diag:
        e("    s_mov_b32 s62, 1")
    e("    s_nop 1")
    e("    s_cmp_eq_u32 s27, s26")
    e("    s_cbranch_scc1 L_fin")
    if diag:
        e("    s_mov_b32 s62, 2")
    e("    s_xor_b32 s26, s26, 3")
    e("    s_mov_b32 s6, 2")
    e(f"    s_mov_b32 s4, {R // U}")
    e(f"    v_xor_b32 v{A}, 0x2000, v{A+U-1}")
    e(f"    v_subrev_u32 v{A}, {(R - 1) * stride}, v{A}")
    for r in range(D):
        if r: e(f"    v_add_u32 v{A+r}, {stride}, v{A+r-1}")
        load(r); dummy()
    e("    s_branch L_loop")
    e("L_end:")
    if LAY:
        a = o.index("L_decide:"); b = o.index("    s_branch L_next") + 1
        blk = o[a:b]; del o[a:b]
        c = o.index("L_loop:")
        o[c:c] = ["    s_branch L_loop"] + blk
    nv = A + U + ((A + U) % 2 + 4 if exact == 2 else 0)
    acc = (nv + 3) // 4 * 4
    e('.section .rodata,"a"')
    e(".p2align 6")
    e(f".amdhsa_kernel {NAME}_kernel")
    e(f"  .amdhsa_next_free_vgpr {nv}")
    e(f"  .amdhsa_next_free_sgpr {72 if diag else 60}")
    e(f"  .amdhsa_accum_offset {acc}")
    e("  .amdhsa_group_segment_fixed_size 0")
    e("  .amdhsa_kernarg_size 40")
    e("  .amdhsa_user_sgpr_count 2")
    e("  .amdhsa_user_sgpr_kernarg_segment_ptr 1")
    e("  .amdhsa_system_sgpr_workgroup_id_x 1")
    e("  .amdhsa_float_denorm_mode_32 3")
    e(".end_amdhsa_kernel")
    return "\n".join(o) + "\n"

if __name__ == "__main__":
    kw = {}
    out = sys.argv[1]
    for a in sys.argv[2:]:
        k, v = a.split("=")
        kw[k] = int(v) if v.lstrip("-").isdigit() else v.replace("+", " ")
    open(out, "w").write(gen(**kw))
```

```python
import sys, math
from gen1 import HEADER, NAME, ROWS, NBYTES

def gen(R=16, T=512, D=2, U=4, K=0, M=5, LM=None, DELTA=0, PMAX=40, ldp="nt", stp="sc1", pp="nt", pol="sc1",
        diag=0, force=-1, lds=0, exact=0, prio=0, HM=0x5bd1e995, lastp=0, lstp="", chaos=0, PFE=1, CPF=0, SW=0, LT=0, EA=0, LAY=0, FE=0, LW=0, SH=0):
    W = T // 64
    S = D + 1 + K
    assert W in (8, 16) and R % U == 0 and D <= U - 1 and D <= 3 and K + 1 <= U - 1
    nwg = ROWS // (W * R)
    assert nwg == 256
    span = W * R * 2048
    lgspan = int(math.log2(span))
    stride = W * 2048
    if LM is None: LM = M
    o = []; e = o.append
    sp = lambda p: (" " + p) if p else ""
    e(HEADER.rstrip())
    e(f"; @launch grid=({nwg},1,1) block=({T},1,1) lds={lds}")
    e('.amdgcn_target "amdgcn-amd-amdhsa--gfx950"')
    e(".text")
    e(f".globl {NAME}_kernel")
    e(".p2align 8")
    e(f".type {NAME}_kernel,@function")
    e(f"{NAME}_kernel:")
    SX, SG, SO = 12, 16, 28
    if diag:
        e("    s_memrealtime s[50:51]")
        e("    s_load_dwordx2 s[64:65], s[0:1], 32")
    if force < 0:
        e("    s_memrealtime s[40:41]")
    e(f"    s_load_dwordx2 s[{SX}:{SX+1}], s[0:1], 0         ; x")
    e(f"    s_load_dwordx2 s[{SG}:{SG+1}], s[0:1], 8         ; g")
    e(f"    s_load_dwordx2 s[{SO}:{SO+1}], s[0:1], 16        ; out")
    e("    s_load_dwordx2 s[10:11], s[0:1], 24        ; debug")
    e(f"    s_cmp_ge_u32 s2, {nwg}")
    e("    s_cbranch_scc1 L_done")
    e("    v_lshrrev_b32 v2, 6, v0                   ; wave")
    e("    v_lshlrev_b32 v1, 4, v0")
    e("    v_readfirstlane_b32 s3, v2")
    e("    v_and_b32 v1, 0x3f0, v1                   ; lane*16")
    if CPF:
        if CPF == 2:
            e("    s_cmp_lt_u32 s2, 128")
            e("    s_cbranch_scc1 L_nopf")
        e("    s_cmp_lg_u32 s3, 1")
        e("    s_cbranch_scc1 L_nopf")
        e("    s_getpc_b64 s[42:43]")
        e("L_pc:")
        e("    v_lshlrev_b32 v6, 3, v1")
        e("    v_mov_b32 v7, s43")
        e("    v_add_co_u32 v6, vcc, s42, v6")
        e("    s_mov_b32 exec_hi, 0")
        e("    s_mov_b32 exec_lo, (1 << ((L_end - L_pc - 1) >> 7)) - 1")
        e("    v_addc_co_u32 v7, vcc, 0, v7, vcc")
        e("    global_load_ubyte v5, v[6:7], off offset:128")
        e("    s_mov_b64 exec, -1")
        e("L_nopf:")
    e("    s_lshr_b32 s48, s2, 3                     ; index among the workgroups with equal id % 8")
    e("    s_and_b32 s22, s2, 3")
    e("    s_lshl2_add_u32 s21, s48, s22")
    e(f"    s_lshl_b32 s21, s21, {lgspan}")
    if W > 8:
        e("    v_and_b32 v4, 7, v2")
        e("    v_lshrrev_b32 v2, 3, v2")
        e("    v_lshl_add_u32 v4, v4, 10, v1")
        e("    v_lshl_add_u32 v2, v2, 14, v4")
    else:
        e("    v_lshl_add_u32 v2, v2, 10, v1")
    X = 24
    GP = X + 4 * U
    A = GP + 4
    e("    s_lshr_b32 s23, s2, 2")
    if SH:
        e(f"    s_lshr_b32 s7, s3, {SH}")
    e(f"    s_xor_b32 s23, s23, {'s7' if SH else 's3'}")
    e("    s_and_b32 s23, s23, 1")
    e("    s_lshl_b32 s49, s23, 13")
    e("    s_or_b32 s49, s49, s21")
    e(f"    v_add_u32 v{A}, s49, v2")
    for r in range(1, D):
        e(f"    v_add_u32 v{A+r}, {stride}, v{A+r-1}")
    e("    s_lshr_b32 s22, s21, 21                   ; page")
    e(f"    s_xor_b32 s9, s22, {'s7' if SH else 's3'}")
    e(f"    s_mov_b32 s{SX+2}, {NBYTES}")
    e(f"    s_mov_b32 s{SX+3}, 0x00020000")
    e(f"    s_mov_b32 s{SG+2}, 1024")
    e(f"    s_mov_b32 s{SG+3}, 0x00020000")
    e(f"    s_mov_b32 s{SO+2}, s{SX+2}")
    e(f"    s_mov_b32 s{SO+3}, 0x00020000")
    e("    s_mov_b32 s20, 0xffff0000")
    e("    s_mov_b32 s6, 0")
    if exact < 2: e("    v_mov_b32 v3, 0x358637bd                  ; eps = 1e-6")
    e("    v_bfrev_b32 v22, 2")
    e("    s_or_b32 s8, s2, s3")
    if force < 0:
        if LM != M: e(f"    s_cselect_b32 s7, {M}, {LM}")
        e("    s_getreg_b32 s27, hwreg(HW_REG_XCC_ID, 0, 3)")
        e("    s_lshl_b32 s45, s27, 4")
        e("    s_lshr_b32 s27, s27, 2")
        e("    s_xor_b32 s27, s27, s22")
        e("    s_xor_b32 s27, s27, s48")
        e("    s_and_b32 s46, s48, 1")
        e("    s_lshl_b32 s46, s46, 13")
        e("    s_lshl_b32 s47, s22, 21")
        e("    s_or_b32 s46, s46, s47")
        e(f"    s_mul_i32 s47, s2, {HM}")
        e("    s_add_u32 s44, s45, s48")
        e("    v_mov_b32 v20, s44")
    if prio:
        e(f"    s_cmp_lt_u32 s3, {W // 2}")
        e("    s_cbranch_scc1 L_noprio")
        e("    s_setprio 1")
        e("L_noprio:")
    if diag:
        e("    s_mov_b32 s54, 0")
        e("    s_mov_b32 s55, 0")
        e("    s_mov_b32 s62, 0")
    e(f"    s_mov_b32 s4, {R // U}")
    e("    s_lshr_b32 s49, s48, 4")
    e("    s_or_b32 s36, s49, s3")
    e("    s_waitcnt lgkmcnt(0)")
    def load(b):
        e(f"    buffer_load_dwordx4 v[{X+4*b}:{X+4*b+3}], v{A+b}, s[{SX}:{SX+3}], 0 offen{sp(ldp)}")
    def dummy():
        e(f"    buffer_load_ubyte v5, v22, s[{SG}:{SG+3}], 0 offen")
    if force < 0:
        e("    s_cbranch_scc1 L_noprobe")
        e("    s_xor_b32 s40, s40, s47")
        e("    s_mul_i32 s40, s40, 0x9e3779b1")
        e("    s_lshr_b32 s40, s40, 11")
        e("    s_and_b32 s40, s40, 0x1fdf80")
        e("    s_or_b32 s46, s46, s40")
        e("    v_mov_b32 v16, s46")
        e("    v_xor_b32 v17, 0x2000, v16")
        e("    s_mov_b64 exec, 1")
        e(f"    buffer_load_dword v18, v16, s[{SX}:{SX+3}], 0 offen{sp(pp)}")
        e(f"    buffer_load_dword v19, v17, s[{SX}:{SX+3}], 0 offen{sp(pp)}")
        if PFE:
            e(f"    global_load_ubyte v5, v20, s[10:11]{sp(pol)}")
        e("    s_mov_b64 exec, -1")
        e("L_noprobe:")
        e("    s_barrier")
    def vote(n):
        e(f"    s_waitcnt vmcnt({n + 1})")
        for i in range(DELTA):
            e("    s_nop 7")
        e("    s_getreg_b32 s44, hwreg(HW_REG_IB_STS, 0, 4)")
        e(f"    s_cmp_le_u32 s44, {n}")
        e("    s_addc_u32 s44, s27, 0")
        if chaos:
            e("    s_lshr_b32 s44, s40, 9")
        e("    s_and_b32 s44, s44, 1")
        e("    s_add_u32 s44, s44, 1")
        e("    v_mov_b32 v16, s44")
        e("    global_store_byte v20, v16, s[10:11]")
        e("    s_mov_b64 exec, -1")
        if diag:
            e("    s_mov_b32 s54, s44")
            e("    s_memrealtime s[56:57]")
            e("    s_waitcnt lgkmcnt(0)")
            e("    s_mov_b32 s55, s56")
    n0 = 2 * D
    if LT and force < 0:
        assert PFE
        gl = lambda: e(f"    buffer_load_dwordx4 v[{GP}:{GP+3}], v1, s[{SG}:{SG+3}], 0 offen")
        if LT == 3:
            load(0); gl()
            e("    s_cmp_lg_u32 s36, 0")
            e("    s_cbranch_scc1 L_rest")
            e("    s_mov_b64 exec, 1")
            vote(3)
            e("L_rest:")
            e("    s_barrier")
        else:
            e("    s_cmp_eq_u32 s36, 0")
            e("    s_cbranch_scc1 L_vote")
            load(0)
            if LT == 2: gl()
            e("    s_barrier")
            e("    s_branch L_rest")
            e("L_vote:")
            e("    s_mov_b64 exec, 1")
            vote(1)
            e("    s_barrier")
            load(0)
            if LT == 2: gl()
            e("L_rest:")
            if LT == 1: gl()
    else:
        load(0)
        e(f"    buffer_load_dwordx4 v[{GP}:{GP+3}], v1, s[{SG}:{SG+3}], 0 offen")
    for r in range(1, D):
        load(r); dummy()
    if force < 0 and not LT:
        e("    s_cmp_lg_u32 s36, 0")
        e("    s_cbranch_scc1 L_novote")
        e("    s_mov_b64 exec, 1")
        if not PFE:
            e(f"    global_load_ubyte v5, v20, s[10:11]{sp(pol)}")
        vote(n0 + 1)
        e(f"    s_waitcnt vmcnt({n0 - PFE})")
        e("    s_branch L_voted")
        e("L_novote:")
    e(f"    s_waitcnt vmcnt({n0 - 2})")
    e("L_voted:")
    for i in range(4):
        e(f"    v_lshlrev_b32 v{8+2*i}, 16, v{GP+i}")
        e(f"    v_and_b32 v{9+2*i}, s20, v{GP+i}")
    def row(b, step, last):
        nb = (b + D) % U; pb = (b + D - 1) % U
        d = X + 4 * b
        e(f"    v_add_u32 v{A+nb}, {step}, v{A+pb}")
        e(f"    s_waitcnt vmcnt({2 * D - 1})")
        load(nb)
        pr = [16, 18, 20, 6]
        un = []
        for i in range(4):
            un.append(f"    v_lshlrev_b32 v{pr[i]}, 16, v{d+i}")
            un.append(f"    v_and_b32 v{pr[i]+1}, s20, v{d+i}")
        dpp = lambda m: e(f"    v_add_f32_dpp v4, v4, v4 {m} bank_mask:0xf")
        if exact < 2:
            e(f"    v_dot2_f32_bf16 v4, v{d}, v{d}, 0")
            for i in range(1, 4):
                e(f"    v_dot2_f32_bf16 v4, v{d+i}, v{d+i}, v4")
            e(un[0]); e(un[1]); e(un[2])
            dpp("quad_perm:[1,0,3,2] row_mask:0xf")
            e(un[3]); e(un[4])
            dpp("quad_perm:[2,3,0,1] row_mask:0xf")
            e(un[5]); e(un[6])
            dpp("row_half_mirror row_mask:0xf")
            e(un[7]); e("    s_nop 0")
        else:
            for u in un: e(u)
            Q = A + U + (A + U) % 2
            for i in range(4):
                e(f"    v_pk_mul_f32 v[{Q+2*(i%2)}:{Q+1+2*(i%2)}], v[{pr[i]}:{pr[i]+1}], v[{pr[i]}:{pr[i]+1}]")
                if i >= 1:
                    j = i - 1
                    e(f"    v_cvt_pk_bf16_f32 v{d+j}, v{Q+2*(j%2)}, v{Q+1+2*(j%2)}")
            e(f"    v_cvt_pk_bf16_f32 v{d+3}, v{Q+2}, v{Q+3}")
            e(f"    v_dot2_f32_bf16 v4, v{d}, s21, 0")
            for i in range(1, 4):
                e(f"    v_dot2_f32_bf16 v4, v{d+i}, s21, v4")
            e("    s_nop 2")
            dpp("quad_perm:[1,0,3,2] row_mask:0xf")
            e("    s_nop 1")
            dpp("quad_perm:[2,3,0,1] row_mask:0xf")
            e("    s_nop 1")
            dpp("row_half_mirror row_mask:0xf")
            e("    s_nop 1")
        dpp("row_mirror row_mask:0xf")
        e("    s_nop 1")
        dpp("row_bcast:15 row_mask:0xa")
        e("    s_nop 1")
        dpp("row_bcast:31 row_mask:0xc")
        if exact:
            e("    v_cvt_pk_bf16_f32 v4, 0, v4")
            if exact == 2:
                e("    v_add_f32 v4, 0x358637bd, v4              ; + 1e-6")
            else:
                e("    v_fmamk_f32 v4, v4, 0x3b000000, v3        ; + eps")
            e("    v_cvt_pk_bf16_f32 v4, 0, v4")
            e("    v_sqrt_f32 v4, v4")
            e("    s_nop 0")
            e("    v_cvt_pk_bf16_f32 v4, 0, v4")
            e("    v_rcp_f32 v4, v4")
        else:
            e("    v_fmamk_f32 v4, v4, 0x3b000000, v3")
            e("    v_rsq_f32 v4, v4")
        e("    s_nop 0")
        e("    v_readlane_b32 s24, v4, 63")
        e("    s_nop 1")
        for i in range(4):
            e(f"    v_pk_mul_f32 v[{pr[i]}:{pr[i]+1}], v[{pr[i]}:{pr[i]+1}], s[24:25] op_sel_hi:[1,0]")
        for i in range(4):
            e(f"    v_pk_mul_f32 v[{pr[i]}:{pr[i]+1}], v[{pr[i]}:{pr[i]+1}], v[{8+2*i}:{9+2*i}]")
        for i in range(4):
            e(f"    v_cvt_pk_bf16_f32 v{d+i}, v{pr[i]}, v{pr[i]+1}")
        if b >= U - lastp:
            if LW and b == U - lastp:
                e(f"    s_cmp_lt_u32 s3, {W // 2}")
                e("    s_addc_u32 s44, s4, 0")
                e("    s_cmp_eq_u32 s44, 0")
            else:
                e("    s_cmp_eq_u32 s4, 0")
            e(f"    s_cbranch_scc1 L_last{b}")
        e(f"    buffer_store_dwordx4 v[{d}:{d+3}], v{A+b}, s[{SO}:{SO+3}], 0 offen{sp(stp)}")
        if b >= U - lastp:
            e(f"    s_branch L_join{b}" if b < U - 1 else "    s_branch L_loop")
            e(f"L_last{b}:")
            if FE and b == U - lastp + (1 if LW else 0):
                e("    s_load_dword s27, s[10:11], 128")
            e(f"    buffer_store_dwordx4 v[{d}:{d+3}], v{A+b}, s[{SO}:{SO+3}], 0 offen{sp(lstp)}")
            e(f"L_join{b}:")
    if exact == 2:
        e("    s_mov_b32 s21, 0x3b003b00                 ; bf16 (1/512, 1/512)")
    e("L_loop:")
    e("    s_sub_u32 s4, s4, 1")
    e("    s_cmp_eq_u32 s4, 0")
    e("    s_cselect_b32 s5, 0x40000000, 0")
    e(f"    s_or_b32 s5, s5, {stride}")
    KB = K if EA else K + 1
    if EA:
        e("    s_cmp_eq_u32 s6, 0")
        if KB >= U - D:
            e("    s_cselect_b32 s38, 0x40000000, s5")
        else:
            e("    s_cselect_b32 s38, 0x40000000, 0")
            e(f"    s_or_b32 s38, s38, {stride}")
    else:
        e(f"    s_mov_b32 s38, {'s5' if KB >= U - D else stride}")
    for b in range(U):
        row(b, "s38" if b == KB else ("s5" if b >= U - D else str(stride)), False)
        if b == K:
            e("    s_cmp_eq_u32 s6, 0")
            e("    s_cbranch_scc1 L_decide")
            e("L_next:")
    if not lastp:
        e("    s_cmp_lg_u32 s4, 0")
        e("    s_cbranch_scc1 L_loop")
    if not (FE and lastp):
        e("    s_load_dword s27, s[10:11], 128")
    e("    s_waitcnt lgkmcnt(0)")
    e("    s_cmp_eq_u32 s27, s26")
    e("    s_cbranch_scc0 L_slow")
    e("L_fin:")
    if diag:
        e(f"""    s_waitcnt vmcnt(0)
    s_memrealtime s[60:61]
    s_mov_b32 s66, 0x1000000
    s_mov_b32 s67, 0x00020000
    s_getreg_b32 s70, hwreg(HW_REG_XCC_ID)
    s_getreg_b32 s71, hwreg(HW_REG_HW_ID)
    s_and_b32 s70, s70, 15
    s_lshl_b32 s70, s70, 24
    s_and_b32 s71, s71, 0xffffff
    s_or_b32 s70, s70, s71
    s_mul_i32 s68, s2, {W}
    s_add_u32 s68, s68, s3
    s_lshl_b32 s68, s68, 5
    s_cmp_eq_u32 s62, 2
    s_cselect_b32 s69, 3, 0
    s_xor_b32 s26, s26, s69
    s_waitcnt lgkmcnt(0)
    v_mov_b32 v4, s50
    v_mov_b32 v5, s52
    v_mov_b32 v6, s60
    v_mov_b32 v7, s26
    v_mov_b32 v8, s54
    v_mov_b32 v9, s55
    v_mov_b32 v10, s62
    v_mov_b32 v11, s70
    v_mov_b32 v12, s68
    s_mov_b64 exec, 1
    buffer_store_dwordx4 v[4:7], v12, s[64:67], 0 offen
    buffer_store_dwordx4 v[8:11], v12, s[64:67], 0 offen offset:16""")
    e("L_done:")
    e("    s_endpgm")
    e("L_decide:")
    mreg = "s7" if LM != M else str(M)
    if force < 0:
        if SW: e(f"    s_waitcnt vmcnt({2 * D - 1})")
        e("    s_load_dwordx4 s[40:43], s[10:11], s45")
        e("    s_mov_b32 s49, 0")
        e("    s_mov_b32 s46, 0x01010101")
        e("    s_mov_b32 s47, s46")
        e("    s_waitcnt lgkmcnt(0)")
        e("    s_bcnt1_i32_b64 s26, s[40:41]")
        e("    s_bcnt1_i32_b64 s58, s[42:43]")
        e("    s_and_b64 s[40:41], s[40:41], s[46:47]")
        e("    s_and_b64 s[42:43], s[42:43], s[46:47]")
        e("    s_add_u32 s58, s58, s26")
        e("    s_bcnt1_i32_b64 s44, s[40:41]")
        e("    s_bcnt1_i32_b64 s26, s[42:43]")
        e("    s_add_u32 s44, s44, s26")
        e("    s_sub_u32 s58, s58, s44")
        e("    s_absdiff_i32 s59, s58, s44")
        e(f"    s_cmp_lt_u32 s59, {mreg}")
        e("    s_cbranch_scc1 L_poll0")
        e("L_decided:")
        if diag:
            e("    s_add_u32 s49, s49, 1")
            e("    s_lshl_b32 s49, s49, 8")
            e("    s_or_b32 s54, s54, s49")
            e("    s_lshl_b32 s49, s44, 16")
            e("    s_or_b32 s54, s54, s49")
            e("    s_lshl_b32 s49, s58, 24")
            e("    s_or_b32 s54, s54, s49")
        e("    s_cmp_gt_u32 s58, s44")
        e("    s_cselect_b32 s26, 2, 1                   ; G + 1")
    else:
        e(f"    s_mov_b32 s26, {force + 1}")
    e("    s_cmp_eq_u32 s8, 0")
    e("    s_cbranch_scc1 L_publish")
    e("L_flagged:")
    e("    s_add_u32 s44, s26, s9")
    e("    s_andn2_b32 s44, 1, s44")
    e("    s_xor_b32 s44, s44, s23")
    e("    s_sub_u32 s49, s44, s23")
    e("    s_lshl_b32 s49, s49, 13")
    if EA:
        e(f"    s_add_u32 s49, s49, {stride}")
        e(f"    v_add_u32 v{A + (K + D) % U}, s49, v{A + (K + D - 1) % U}")
        load((K + D) % U); dummy()
    else:
        e("    s_add_u32 s38, s38, s49")
    e("    s_mov_b32 s6, 1")
    if diag:
        e("    s_memrealtime s[52:53]")
    e("    s_branch L_next")
    e("L_publish:")
    e("    s_mov_b64 exec, 1")
    e("    v_mov_b32 v20, 128")
    e("    v_mov_b32 v21, s26")
    e("    global_store_byte v20, v21, s[10:11] sc0 sc1")
    e("    s_mov_b64 exec, -1")
    e("    s_branch L_flagged")
    if force < 0:
        e("L_poll0:                                       ; fresh reads of the votes (lanes 0-15) and of the flag (lane 16)")
        e("    v_lshrrev_b32 v20, 4, v1")
        e("    v_add_u32 v20, s45, v20")
        e("    s_mov_b64 exec, 0x10000")
        e("    v_mov_b32 v20, 128")
        e("L_poll:")
        e("    s_mov_b64 exec, 0x1ffff")
        e(f"    global_load_ubyte v21, v20, s[10:11]{sp(pol)}")
        e("    s_add_u32 s49, s49, 1")
        e("    s_waitcnt vmcnt(0)")
        e("    v_readlane_b32 s26, v21, 16")
        e("    v_cmp_eq_u32 vcc, 1, v21")
        e("    v_cmp_eq_u32 s[58:59], 2, v21")
        e("    s_mov_b64 exec, -1")
        e("    s_cmp_lg_u32 s26, 0")
        e("    s_cbranch_scc1 L_flagged")
        e("    s_bcnt1_i32_b64 s44, vcc")
        e("    s_bcnt1_i32_b64 s58, s[58:59]")
        e("    s_absdiff_i32 s59, s58, s44")
        e(f"    s_cmp_ge_u32 s59, {mreg}")
        e("    s_cbranch_scc1 L_decided")
        e("    s_add_u32 s59, s58, s44")
        e("    s_lshr_b32 s59, s59, 4")
        e("    s_cmp_gt_u32 s59, s8")
        e("    s_cbranch_scc1 L_decided")
        e(f"    s_cmp_lt_u32 s49, {PMAX}")
        e("    s_cbranch_scc1 L_poll")
        e("    s_branch L_decided")
    e("L_slow:")
    e("    s_cmp_eq_u32 s6, 2")
    e("    s_cbranch_scc1 L_fin")
    e("    v_mov_b32 v20, 128")
    e("    global_load_ubyte v21, v20, s[10:11] sc0 sc1")
    e("    s_waitcnt vmcnt(0)")
    e("    v_readfirstlane_b32 s27, v21")
    if diag:
        e("    s_mov_b32 s62, 1")
    e("    s_nop 1")
    e("    s_cmp_eq_u32 s27, s26")
    e("    s_cbranch_scc1 L_fin")
    if diag:
        e("    s_mov_b32 s62, 2")
    e("    s_xor_b32 s26, s26, 3")
    e("    s_mov_b32 s6, 2")
    e(f"    s_mov_b32 s4, {R // U}")
    e(f"    v_xor_b32 v{A}, 0x2000, v{A+U-1}")
    e(f"    v_subrev_u32 v{A}, {(R - 1) * stride}, v{A}")
    for r in range(D):
        if r: e(f"    v_add_u32 v{A+r}, {stride}, v{A+r-1}")
        load(r); dummy()
    e("    s_branch L_loop")
    e("L_end:")
    if LAY:
        a = o.index("L_decide:"); b = o.index("    s_branch L_next") + 1
        blk = o[a:b]; del o[a:b]
        c = o.index("L_loop:")
        o[c:c] = ["    s_branch L_loop"] + blk
    nv = A + U + ((A + U) % 2 + 4 if exact == 2 else 0)
    acc = (nv + 3) // 4 * 4
    e('.section .rodata,"a"')
    e(".p2align 6")
    e(f".amdhsa_kernel {NAME}_kernel")
    e(f"  .amdhsa_next_free_vgpr {nv}")
    e(f"  .amdhsa_next_free_sgpr {72 if diag else 60}")
    e(f"  .amdhsa_accum_offset {acc}")
    e("  .amdhsa_group_segment_fixed_size 0")
    e("  .amdhsa_kernarg_size 40")
    e("  .amdhsa_user_sgpr_count 2")
    e("  .amdhsa_user_sgpr_kernarg_segment_ptr 1")
    e("  .amdhsa_system_sgpr_workgroup_id_x 1")
    e("  .amdhsa_float_denorm_mode_32 3")
    e(".end_amdhsa_kernel")
    return "\n".join(o) + "\n"

if __name__ == "__main__":
    kw = {}
    out = sys.argv[1]
    for a in sys.argv[2:]:
        k, v = a.split("=")
        kw[k] = int(v) if v.lstrip("-").isdigit() else v.replace("+", " ")
    open(out, "w").write(gen(**kw))
```

```python
import sys

NAME = "standalone__rmsnorm__sampling"
M = 6
PMAX = 40
STRIDE = 16384

def gen(M=M, PMAX=PMAX, chaos=0):
    o = []; e = o.append
    e(f"""; Kernarg layout for this problem (40 bytes, ptrs only, base s[0:1]):
; @launch grid=(256,1,1) block=(512,1,1) lds=0
;
;
;
.amdgcn_target "amdgcn-amd-amdhsa--gfx950"
.text
.globl {NAME}_kernel
.p2align 8
.type {NAME}_kernel,@function
{NAME}_kernel:
    s_memrealtime s[40:41]
    s_load_dwordx2 s[12:13], s[0:1], 0            ; x     -> SRD s[12:15]
    s_load_dwordx2 s[16:17], s[0:1], 8            ; g     -> SRD s[16:19]
    s_load_dwordx2 s[28:29], s[0:1], 16
    s_load_dwordx2 s[10:11], s[0:1], 24           ; debug
    s_cmp_ge_u32 s2, 256
    s_cbranch_scc1 L_done
    v_lshrrev_b32 v2, 6, v0
    v_lshlrev_b32 v1, 4, v0
    v_readfirstlane_b32 s3, v2                    ; wave
    v_and_b32 v1, 0x3f0, v1                       ; lane * 16
    s_lshr_b32 s48, s2, 3
    s_and_b32 s22, s2, 3
    s_lshl2_add_u32 s21, s48, s22
    s_lshl_b32 s21, s21, 18
    s_lshr_b32 s23, s2, 2
    s_lshr_b32 s7, s3, 1
    s_xor_b32 s23, s23, s7
    s_and_b32 s23, s23, 1
    s_lshl_b32 s49, s23, 13
    s_or_b32 s49, s49, s21
    s_brev_b32 s44, s3
    s_lshr_b32 s44, s44, 19
    s_or_b32 s49, s49, s44
    v_add_u32 v44, s49, v1
    v_add_u32 v45, {STRIDE}, v44
    s_lshr_b32 s22, s21, 21
    s_xor_b32 s9, s22, s7
    s_mov_b32 s14, 0x2000000
    s_mov_b32 s15, 0x00020000
    s_mov_b32 s18, 1024
    s_mov_b32 s19, 0x00020000
    s_mov_b32 s30, s14
    s_mov_b32 s31, 0x00020000
    s_mov_b32 s20, 0xffff0000
    s_mov_b32 s6, 0
    s_mov_b32 s4, 4
    v_bfrev_b32 v22, 2
    s_or_b32 s8, s2, s3
    s_getreg_b32 s27, hwreg(HW_REG_XCC_ID, 0, 3)
    s_lshl_b32 s45, s27, 4
    s_lshr_b32 s27, s27, 2
    s_xor_b32 s27, s27, s22
    s_xor_b32 s27, s27, s48
    s_and_b32 s46, s48, 1
    s_lshl_b32 s46, s46, 13
    s_lshl_b32 s47, s22, 21
    s_or_b32 s46, s46, s47
    s_mul_i32 s47, s2, 0x5bd1e995
    s_add_u32 s44, s45, s48
    v_mov_b32 v20, s44
    s_lshr_b32 s49, s48, 4
    s_or_b32 s36, s49, s3
    s_cbranch_scc1 L_noprobe
    s_waitcnt lgkmcnt(8)
    s_xor_b32 s40, s40, s47
    s_mul_i32 s40, s40, 0x9e3779b1
    s_lshr_b32 s40, s40, 11
    s_and_b32 s40, s40, 0x1fdf80
    s_or_b32 s46, s46, s40
    v_mov_b32 v16, s46
    v_xor_b32 v17, 0x2000, v16
    s_mov_b64 exec, 1
    s_waitcnt lgkmcnt(0)
    buffer_load_dword v18, v16, s[12:15], 0 offen nt
    buffer_load_dword v19, v17, s[12:15], 0 offen nt
    global_load_ubyte v5, v20, s[10:11] sc1
    s_mov_b64 exec, -1
L_noprobe:
    s_waitcnt lgkmcnt(0)
    s_barrier
    buffer_load_dwordx4 v[24:27], v44, s[12:15], 0 offen nt
    buffer_load_dwordx4 v[40:43], v1, s[16:19], 0 offen
    s_cmp_lg_u32 s36, 0
    s_cbranch_scc1 L_novote
    s_mov_b64 exec, 1
    s_waitcnt vmcnt(4)
    s_getreg_b32 s44, hwreg(HW_REG_IB_STS, 0, 4)  ; vmcnt
    s_cmp_le_u32 s44, 3
    s_addc_u32 s44, s27, 0""")
    if chaos & 1: e("    s_lshr_b32 s44, s40, 9")
    e(f"""    s_and_b32 s44, s44, 1
    s_add_u32 s44, s44, 1
    v_mov_b32 v16, s44
    global_store_byte v20, v16, s[10:11]          ; vote: G + 1
    s_mov_b64 exec, -1
L_novote:
    s_barrier
    buffer_load_dwordx4 v[28:31], v45, s[12:15], 0 offen nt
    buffer_load_ubyte v5, v22, s[16:19], 0 offen
    s_waitcnt vmcnt(2)
    v_lshlrev_b32 v8, 16, v40
    v_and_b32 v9, s20, v40
    v_lshlrev_b32 v10, 16, v41
    v_and_b32 v11, s20, v41
    v_lshlrev_b32 v12, 16, v42
    v_and_b32 v13, s20, v42
    v_lshlrev_b32 v14, 16, v43
    v_and_b32 v15, s20, v43
    s_mov_b32 s21, 0x3b003b00                     ; bf16 (1/512, 1/512)
    s_branch L_loop

L_choose:
    s_waitcnt vmcnt(3)
    s_load_dwordx4 s[40:43], s[10:11], s45
    s_mov_b32 s49, 0
    s_mov_b32 s46, 0x01010101
    s_mov_b32 s47, s46
    s_waitcnt lgkmcnt(0)
    s_bcnt1_i32_b64 s26, s[40:41]
    s_bcnt1_i32_b64 s58, s[42:43]
    s_and_b64 s[40:41], s[40:41], s[46:47]
    s_and_b64 s[42:43], s[42:43], s[46:47]
    s_add_u32 s58, s58, s26
    s_bcnt1_i32_b64 s44, s[40:41]
    s_bcnt1_i32_b64 s26, s[42:43]
    s_add_u32 s44, s44, s26
    s_sub_u32 s58, s58, s44
    s_absdiff_i32 s59, s58, s44
    s_cmp_lt_u32 s59, {M}
    s_cbranch_scc1 L_poll0
L_majority:
    s_cmp_gt_u32 s58, s44
    s_cselect_b32 s26, 2, 1                       ; s26 = assumed G + 1
    s_cmp_eq_u32 s8, 0
    s_cbranch_scc1 L_publish
L_chosen:
    s_add_u32 s44, s26, s9
    s_andn2_b32 s44, 1, s44
    s_xor_b32 s44, s44, s23
    s_sub_u32 s49, s44, s23
    s_lshl_b32 s49, s49, 13
    s_add_u32 s38, s38, s49
    s_mov_b32 s6, 1
    s_branch L_row1

L_loop:
    s_sub_u32 s4, s4, 1
    s_cmp_eq_u32 s4, 0
    s_cselect_b32 s5, 0x40000000, 0
    s_or_b32 s5, s5, {STRIDE}
    s_mov_b32 s38, {STRIDE}""")
    pr = [16, 18, 20, 6]
    def row(b, step):
        nb = (b + 2) % 4; pb = (b + 1) % 4
        d = 24 + 4 * b; n = 24 + 4 * nb
        c = (lambda t: f"{'':<4}; {t}") if b == 0 else (lambda t: "")
        e(f"    v_add_u32 v{44+nb}, {step}, v{44+pb}")
        e("    s_waitcnt vmcnt(3)")
        e(f"    buffer_load_dwordx4 v[{n}:{n+3}], v{44+nb}, s[12:15], 0 offen nt")
        for i in range(4):
            e(f"    v_lshlrev_b32 v{pr[i]}, 16, v{d+i}" + (c("x as fp32") if i == 0 else ""))
            e(f"    v_and_b32 v{pr[i]+1}, s20, v{d+i}")
        for i in range(4):
            q = 48 + 2 * (i % 2)
            e(f"    v_pk_mul_f32 v[{q}:{q+1}], v[{pr[i]}:{pr[i]+1}], v[{pr[i]}:{pr[i]+1}]")
            if i >= 1:
                j = i - 1; qq = 48 + 2 * (j % 2)
                e(f"    v_cvt_pk_bf16_f32 v{d+j}, v{qq}, v{qq+1}" + (c("x*x as bf16") if j == 0 else ""))
        e(f"    v_cvt_pk_bf16_f32 v{d+3}, v50, v51")
        e(f"    v_dot2_f32_bf16 v4, v{d}, s21, 0" + c("lane's share of the mean, fp32"))
        for i in range(1, 4):
            e(f"    v_dot2_f32_bf16 v4, v{d+i}, s21, v4")
        e("    s_nop 2")
        for k, m in enumerate(("quad_perm:[1,0,3,2] row_mask:0xf", "quad_perm:[2,3,0,1] row_mask:0xf", "row_half_mirror row_mask:0xf",
                  "row_mirror row_mask:0xf", "row_bcast:15 row_mask:0xa", "row_bcast:31 row_mask:0xc")):
            if k: e("    s_nop 1")
            e(f"    v_add_f32_dpp v4, v4, v4 {m} bank_mask:0xf")
        e("    v_cvt_pk_bf16_f32 v4, 0, v4" + c("lane 63: mean as bf16, in the high half = fp32"))
        e("    v_add_f32 v4, 0x358637bd, v4" + c("+ 1e-6"))
        e("    v_cvt_pk_bf16_f32 v4, 0, v4")
        e("    v_sqrt_f32 v4, v4")
        e("    s_nop 0")
        e("    v_cvt_pk_bf16_f32 v4, 0, v4" + c("rms as bf16"))
        e("    v_rcp_f32 v4, v4")
        e("    s_nop 0")
        e("    v_readlane_b32 s24, v4, 63")
        e("    s_nop 1")
        for i in range(4):
            e(f"    v_pk_mul_f32 v[{pr[i]}:{pr[i]+1}], v[{pr[i]}:{pr[i]+1}], s[24:25] op_sel_hi:[1,0]")
        for i in range(4):
            e(f"    v_pk_mul_f32 v[{pr[i]}:{pr[i]+1}], v[{pr[i]}:{pr[i]+1}], v[{8+2*i}:{9+2*i}]")
        for i in range(4):
            e(f"    v_cvt_pk_bf16_f32 v{d+i}, v{pr[i]}, v{pr[i]+1}")
        st = f"    buffer_store_dwordx4 v[{d}:{d+3}], v{44+b}, s[28:31], 0 offen"
        if b < 2:
            e(st + " sc1")
        else:
            e("    s_cmp_eq_u32 s4, 0")
            e(f"    s_cbranch_scc1 L_last{b}")
            e(st + " sc1")
            e("    s_branch L_row3" if b == 2 else "    s_branch L_loop")
            e(f"L_last{b}:" + ("                                          ; the last two rows stay in L2 (quick ack)" if b == 2 else ""))
            if b == 2: e("    s_load_dword s27, s[10:11], 128")
            e(st)
    row(0, STRIDE)
    e("    s_cmp_eq_u32 s6, 0")
    e("    s_cbranch_scc1 L_choose")
    e("L_row1:")
    row(1, "s38")
    row(2, "s5")
    e("L_row3:")
    row(3, "s5")
    e(f"""    s_waitcnt lgkmcnt(0)
    s_cmp_eq_u32 s27, s26
    s_cbranch_scc0 L_check
L_done:
    s_endpgm

L_publish:
    s_mov_b64 exec, 1
    v_mov_b32 v20, 128
    v_mov_b32 v21, s26
    global_store_byte v20, v21, s[10:11] sc0 sc1
    s_mov_b64 exec, -1
    s_branch L_chosen
L_poll0:                                          ; no clear lead: fresh reads of the votes (lanes 0-15) and the flag (lane 16)
    v_lshrrev_b32 v20, 4, v1
    v_add_u32 v20, s45, v20
    s_mov_b64 exec, 0x10000
    v_mov_b32 v20, 128
L_poll:
    s_mov_b64 exec, 0x1ffff
    global_load_ubyte v21, v20, s[10:11] sc1
    s_add_u32 s49, s49, 1
    s_waitcnt vmcnt(0)
    v_readlane_b32 s26, v21, 16
    v_cmp_eq_u32 vcc, 1, v21
    v_cmp_eq_u32 s[58:59], 2, v21
    s_mov_b64 exec, -1
    s_cmp_lg_u32 s26, 0
    s_cbranch_scc1 L_chosen
    s_bcnt1_i32_b64 s44, vcc
    s_bcnt1_i32_b64 s58, s[58:59]
    s_absdiff_i32 s59, s58, s44
    s_cmp_ge_u32 s59, {M}
    s_cbranch_scc1 L_majority
    s_add_u32 s59, s58, s44
    s_lshr_b32 s59, s59, 4
    s_cmp_gt_u32 s59, s8
    s_cbranch_scc1 L_majority
    s_cmp_lt_u32 s49, {PMAX}
    s_cbranch_scc1 L_poll
    s_branch L_majority
L_check:
    s_cmp_eq_u32 s6, 2
    s_cbranch_scc1 L_done
    v_mov_b32 v20, 128
    global_load_ubyte v21, v20, s[10:11] sc0 sc1
    s_waitcnt vmcnt(0)
    v_readfirstlane_b32 s27, v21
    s_nop 1
    s_cmp_eq_u32 s27, s26
    s_cbranch_scc1 L_done
    s_xor_b32 s26, s26, 3
    s_mov_b32 s6, 2
    s_mov_b32 s4, 4
    v_xor_b32 v44, 0x2000, v47
    v_subrev_u32 v44, {15 * STRIDE}, v44
    buffer_load_dwordx4 v[24:27], v44, s[12:15], 0 offen nt
    buffer_load_ubyte v5, v22, s[16:19], 0 offen
    v_add_u32 v45, {STRIDE}, v44
    buffer_load_dwordx4 v[28:31], v45, s[12:15], 0 offen nt
    buffer_load_ubyte v5, v22, s[16:19], 0 offen
    s_branch L_loop
.section .rodata,"a"
.p2align 6
.amdhsa_kernel {NAME}_kernel
  .amdhsa_next_free_vgpr 52
  .amdhsa_next_free_sgpr 60
  .amdhsa_accum_offset 52
  .amdhsa_group_segment_fixed_size 0
  .amdhsa_kernarg_size 40
  .amdhsa_user_sgpr_count 2
  .amdhsa_user_sgpr_kernarg_segment_ptr 1
  .amdhsa_system_sgpr_workgroup_id_x 1
  .amdhsa_float_denorm_mode_32 3
.end_amdhsa_kernel""")
    t = "\n".join(o) + "\n"
    if chaos & 2: t = t.replace("    global_store_byte v20, v21, s[10:11] sc0 sc1\n", "")
    return t

if __name__ == "__main__":
    open(sys.argv[1], "w").write(gen())
```

```python
import sys

NAME = "standalone__rmsnorm__sampling"
M = 6
PMAX = 40
STRIDE = 16384

def gen(M=M, PMAX=PMAX, chaos=0):
    o = []; e = o.append
    e(f"""; Kernarg layout for this problem (40 bytes, ptrs only, base s[0:1]):
; @launch grid=(256,1,1) block=(512,1,1) lds=0
;
;
;
.amdgcn_target "amdgcn-amd-amdhsa--gfx950"
.text
.globl {NAME}_kernel
.p2align 8
.type {NAME}_kernel,@function
{NAME}_kernel:
    s_memrealtime s[40:41]
    s_load_dwordx2 s[12:13], s[0:1], 0            ; x     -> SRD s[12:15]
    s_load_dwordx2 s[16:17], s[0:1], 8            ; g     -> SRD s[16:19]
    s_load_dwordx2 s[28:29], s[0:1], 16
    s_load_dwordx2 s[10:11], s[0:1], 24           ; debug
    s_cmp_ge_u32 s2, 256
    s_cbranch_scc1 L_done
    v_lshrrev_b32 v2, 6, v0
    v_lshlrev_b32 v1, 4, v0
    v_readfirstlane_b32 s3, v2                    ; wave
    v_and_b32 v1, 0x3f0, v1                       ; lane * 16
    s_lshr_b32 s48, s2, 3
    s_and_b32 s22, s2, 3
    s_lshl2_add_u32 s21, s48, s22
    s_lshl_b32 s21, s21, 18
    s_lshr_b32 s23, s2, 2
    s_lshr_b32 s7, s3, 1
    s_xor_b32 s23, s23, s7
    s_and_b32 s23, s23, 1
    s_lshl_b32 s49, s23, 13
    s_or_b32 s49, s49, s21
    s_brev_b32 s44, s3
    s_lshr_b32 s44, s44, 19
    s_or_b32 s49, s49, s44
    v_add_u32 v44, s49, v1
    v_add_u32 v45, {STRIDE}, v44
    s_lshr_b32 s22, s21, 21
    s_xor_b32 s9, s22, s7
    s_mov_b32 s14, 0x2000000
    s_mov_b32 s15, 0x00020000
    s_mov_b32 s18, 1024
    s_mov_b32 s19, 0x00020000
    s_mov_b32 s30, s14
    s_mov_b32 s31, 0x00020000
    s_mov_b32 s20, 0xffff0000
    s_mov_b32 s6, 0
    s_mov_b32 s4, 4
    s_or_b32 s8, s2, s3
    s_getreg_b32 s27, hwreg(HW_REG_XCC_ID, 0, 3)
    s_lshl_b32 s45, s27, 4
    s_lshr_b32 s27, s27, 2
    s_xor_b32 s27, s27, s22
    s_xor_b32 s27, s27, s48
    s_and_b32 s46, s48, 1
    s_lshl_b32 s46, s46, 13
    s_lshl_b32 s47, s22, 21
    s_or_b32 s46, s46, s47
    s_mul_i32 s47, s2, 0x5bd1e995
    s_add_u32 s44, s45, s48
    v_mov_b32 v20, s44
    s_lshr_b32 s49, s48, 4
    s_or_b32 s36, s49, s3
    s_cbranch_scc1 L_noprobe
    s_waitcnt lgkmcnt(8)
    s_xor_b32 s42, s40, s47
    s_mul_i32 s42, s42, 0x9e3779b1
    s_lshr_b32 s42, s42, 11
    s_and_b32 s42, s42, 0x1fdf80
    s_or_b32 s46, s46, s42
    v_mov_b32 v16, s46
    v_xor_b32 v17, 0x2000, v16
    s_mov_b64 exec, 1
    s_waitcnt lgkmcnt(0)
    buffer_load_dword v18, v16, s[12:15], 0 offen nt
    buffer_load_dword v19, v17, s[12:15], 0 offen nt
    global_load_ubyte v5, v20, s[10:11] sc1
    s_mov_b64 exec, -1
L_noprobe:
    s_waitcnt lgkmcnt(0)
    s_barrier
    buffer_load_dwordx4 v[24:27], v44, s[12:15], 0 offen nt
    buffer_load_dwordx4 v[40:43], v1, s[16:19], 0 offen
    s_cmp_lg_u32 s36, 0
    s_cbranch_scc1 L_novote
    s_mov_b64 exec, 1
    s_waitcnt vmcnt(4)
    s_getreg_b32 s44, hwreg(HW_REG_IB_STS, 0, 4)  ; vmcnt
    s_cmp_le_u32 s44, 3
    s_addc_u32 s44, s27, 0""")
    if chaos & 1: e("    s_lshr_b32 s44, s42, 9")
    e(f"""    s_and_b32 s44, s44, 1
    s_add_u32 s44, s44, 1
    v_mov_b32 v16, s44
    global_store_byte v20, v16, s[10:11]          ; vote: G + 1
    s_mov_b64 exec, -1
L_novote:
    s_barrier
    buffer_load_dwordx4 v[28:31], v45, s[12:15], 0 offen nt
    s_waitcnt vmcnt(1)
    v_lshlrev_b32 v8, 16, v40
    v_and_b32 v9, s20, v40
    v_lshlrev_b32 v10, 16, v41
    v_and_b32 v11, s20, v41
    v_lshlrev_b32 v12, 16, v42
    v_and_b32 v13, s20, v42
    v_lshlrev_b32 v14, 16, v43
    v_and_b32 v15, s20, v43
    s_mov_b32 s21, 0x3b003b00                     ; bf16 (1/512, 1/512)
    s_branch L_loop

L_choose:
    s_waitcnt vmcnt(2)
    s_load_dwordx4 s[40:43], s[10:11], s45
    s_mov_b32 s49, 0
    s_mov_b32 s46, 0x01010101
    s_mov_b32 s47, s46
    s_waitcnt lgkmcnt(0)
    s_bcnt1_i32_b64 s26, s[40:41]
    s_bcnt1_i32_b64 s58, s[42:43]
    s_and_b64 s[40:41], s[40:41], s[46:47]
    s_and_b64 s[42:43], s[42:43], s[46:47]
    s_add_u32 s58, s58, s26
    s_bcnt1_i32_b64 s44, s[40:41]
    s_bcnt1_i32_b64 s26, s[42:43]
    s_add_u32 s44, s44, s26
    s_sub_u32 s58, s58, s44
    s_absdiff_i32 s59, s58, s44
    s_cmp_lt_u32 s59, {M}
    s_cbranch_scc1 L_poll0
L_majority:
    s_cmp_gt_u32 s58, s44
    s_cselect_b32 s26, 2, 1                       ; s26 = assumed G + 1
    s_cmp_eq_u32 s8, 0
    s_cbranch_scc1 L_publish
L_chosen:
    s_add_u32 s44, s26, s9
    s_andn2_b32 s44, 1, s44
    s_xor_b32 s44, s44, s23
    s_sub_u32 s49, s44, s23
    s_lshl_b32 s49, s49, 13
    s_add_u32 s38, s38, s49
    s_mov_b32 s6, 1
    s_branch L_row1

L_loop:
    s_sub_u32 s4, s4, 1
    s_cmp_eq_u32 s4, 0
    s_cselect_b32 s5, 0x40000000, 0
    s_or_b32 s5, s5, {STRIDE}
    s_mov_b32 s38, {STRIDE}""")
    pr = [16, 18, 20, 6]
    def row(b, step):
        nb = (b + 2) % 4; pb = (b + 1) % 4
        d = 24 + 4 * b; n = 24 + 4 * nb
        c = (lambda t: f"{'':<4}; {t}") if b == 0 else (lambda t: "")
        e(f"    v_add_u32 v{44+nb}, {step}, v{44+pb}")
        e("    s_waitcnt vmcnt(3)")
        e(f"    buffer_load_dwordx4 v[{n}:{n+3}], v{44+nb}, s[12:15], 0 offen nt")
        for i in range(4):
            e(f"    v_lshlrev_b32 v{pr[i]}, 16, v{d+i}" + (c("x as fp32") if i == 0 else ""))
            e(f"    v_and_b32 v{pr[i]+1}, s20, v{d+i}")
        for i in range(4):
            q = 48 + 2 * (i % 2)
            e(f"    v_pk_mul_f32 v[{q}:{q+1}], v[{pr[i]}:{pr[i]+1}], v[{pr[i]}:{pr[i]+1}]")
            if i >= 1:
                j = i - 1; qq = 48 + 2 * (j % 2)
                e(f"    v_cvt_pk_bf16_f32 v{d+j}, v{qq}, v{qq+1}" + (c("x*x as bf16") if j == 0 else ""))
        e(f"    v_cvt_pk_bf16_f32 v{d+3}, v50, v51")
        e(f"    v_dot2_f32_bf16 v4, v{d}, s21, 0" + c("lane's share of the mean, fp32"))
        for i in range(1, 4):
            e(f"    v_dot2_f32_bf16 v4, v{d+i}, s21, v4")
        e("    s_nop 2")
        for k, m in enumerate(("quad_perm:[1,0,3,2] row_mask:0xf", "quad_perm:[2,3,0,1] row_mask:0xf", "row_half_mirror row_mask:0xf",
                  "row_mirror row_mask:0xf", "row_bcast:15 row_mask:0xa", "row_bcast:31 row_mask:0xc")):
            if k: e("    s_nop 1")
            e(f"    v_add_f32_dpp v4, v4, v4 {m} bank_mask:0xf")
        e("    v_cvt_pk_bf16_f32 v4, 0, v4" + c("lane 63: mean as bf16, in the high half = fp32"))
        e("    v_add_f32 v4, 0x358637bd, v4" + c("+ 1e-6"))
        e("    v_cvt_pk_bf16_f32 v4, 0, v4")
        e("    v_sqrt_f32 v4, v4")
        e("    s_nop 0")
        e("    v_cvt_pk_bf16_f32 v4, 0, v4" + c("rms as bf16"))
        e("    v_rcp_f32 v4, v4")
        e("    s_nop 0")
        e("    v_readlane_b32 s24, v4, 63")
        e("    s_nop 1")
        for i in range(4):
            e(f"    v_pk_mul_f32 v[{pr[i]}:{pr[i]+1}], v[{pr[i]}:{pr[i]+1}], s[24:25] op_sel_hi:[1,0]")
        for i in range(4):
            e(f"    v_pk_mul_f32 v[{pr[i]}:{pr[i]+1}], v[{pr[i]}:{pr[i]+1}], v[{8+2*i}:{9+2*i}]")
        for i in range(4):
            e(f"    v_cvt_pk_bf16_f32 v{d+i}, v{pr[i]}, v{pr[i]+1}")
        st = f"    buffer_store_dwordx4 v[{d}:{d+3}], v{44+b}, s[28:31], 0 offen"
        if b < 2:
            e(st + " sc1")
        else:
            e("    s_cmp_eq_u32 s4, 0")
            e(f"    s_cbranch_scc1 L_last{b}")
            e(st + " sc1")
            e("    s_branch L_row3" if b == 2 else "    s_branch L_loop")
            e(f"L_last{b}:" + ("                                          ; the last two rows stay in L2 (quick ack)" if b == 2 else ""))
            if b == 2: e("    s_load_dword s27, s[10:11], 128")
            e(st)
    row(0, STRIDE)
    e("    s_cmp_eq_u32 s6, 0")
    e("    s_cbranch_scc1 L_choose")
    e("L_row1:")
    row(1, "s38")
    row(2, "s5")
    e("L_row3:")
    row(3, "s5")
    e(f"""    s_waitcnt lgkmcnt(0)
    s_cmp_eq_u32 s27, s26
    s_cbranch_scc0 L_check
L_done:
    s_endpgm

L_publish:
    s_mov_b64 exec, 1
    v_mov_b32 v20, 128
    v_mov_b32 v21, s26
    global_store_byte v20, v21, s[10:11] sc0 sc1
    s_mov_b64 exec, -1
    s_branch L_chosen
L_poll0:                                          ; no clear lead: fresh reads of the votes (lanes 0-15) and the flag (lane 16)
    v_lshrrev_b32 v20, 4, v1
    v_add_u32 v20, s45, v20
    s_mov_b64 exec, 0x10000
    v_mov_b32 v20, 128
L_poll:
    s_mov_b64 exec, 0x1ffff
    global_load_ubyte v21, v20, s[10:11] sc1
    s_add_u32 s49, s49, 1
    s_waitcnt vmcnt(0)
    v_readlane_b32 s26, v21, 16
    v_cmp_eq_u32 vcc, 1, v21
    v_cmp_eq_u32 s[58:59], 2, v21
    s_mov_b64 exec, -1
    s_cmp_lg_u32 s26, 0
    s_cbranch_scc1 L_chosen
    s_bcnt1_i32_b64 s44, vcc
    s_bcnt1_i32_b64 s58, s[58:59]
    s_absdiff_i32 s59, s58, s44
    s_cmp_ge_u32 s59, {M}
    s_cbranch_scc1 L_majority
    s_add_u32 s59, s58, s44
    s_lshr_b32 s59, s59, 4
    s_cmp_gt_u32 s59, s8
    s_cbranch_scc1 L_majority
    s_cmp_lt_u32 s49, {PMAX}
    s_cbranch_scc1 L_poll
    s_branch L_majority
L_check:
    s_cmp_eq_u32 s6, 2
    s_cbranch_scc1 L_done
    v_mov_b32 v20, 128
    global_load_ubyte v21, v20, s[10:11] sc0 sc1
    s_waitcnt vmcnt(0)
    v_readfirstlane_b32 s27, v21
    s_nop 1
    s_cmp_eq_u32 s27, s26
    s_cbranch_scc1 L_done
    s_xor_b32 s26, s26, 3
    s_mov_b32 s6, 2
    s_mov_b32 s4, 4
    v_xor_b32 v44, 0x2000, v47
    v_subrev_u32 v44, {15 * STRIDE}, v44
    v_add_u32 v45, {STRIDE}, v44
    buffer_load_dwordx4 v[24:27], v44, s[12:15], 0 offen nt
    buffer_load_dwordx4 v[28:31], v45, s[12:15], 0 offen nt
    s_waitcnt vmcnt(0)
    s_branch L_loop
.section .rodata,"a"
.p2align 6
.amdhsa_kernel {NAME}_kernel
  .amdhsa_next_free_vgpr 52
  .amdhsa_next_free_sgpr 60
  .amdhsa_accum_offset 52
  .amdhsa_group_segment_fixed_size 0
  .amdhsa_kernarg_size 40
  .amdhsa_user_sgpr_count 2
  .amdhsa_user_sgpr_kernarg_segment_ptr 1
  .amdhsa_system_sgpr_workgroup_id_x 1
  .amdhsa_float_denorm_mode_32 3
.end_amdhsa_kernel""")
    t = "\n".join(o) + "\n"
    if chaos & 2: t = t.replace("    global_store_byte v20, v21, s[10:11] sc0 sc1\n", "")
    return t

if __name__ == "__main__":
    open(sys.argv[1], "w").write(gen())
```

```python
import sys

NAME = "standalone__rmsnorm__sampling"
M = 6
PMAX = 40
STRIDE = 16384

def gen(M=M, PMAX=PMAX, chaos=0, HE=0, KA=0):
    o = []; e = o.append
    e(f"""; Kernarg layout for this problem (40 bytes, ptrs only, base s[0:1]):
; @launch grid=(256,1,1) block=(512,1,1) lds=0
;
;
;
.amdgcn_target "amdgcn-amd-amdhsa--gfx950"
.text
.globl {NAME}_kernel
.p2align 8
.type {NAME}_kernel,@function
{NAME}_kernel:
    s_memrealtime s[40:41]
    s_load_dwordx2 s[12:13], s[0:1], 0            ; x     -> SRD s[12:15]
    s_load_dwordx2 s[16:17], s[0:1], 8            ; g     -> SRD s[16:19]
    s_load_dwordx2 s[28:29], s[0:1], 16
    s_load_dwordx2 s[10:11], s[0:1], 24           ; debug
    s_cmp_ge_u32 s2, 256
    s_cbranch_scc1 L_done
    v_lshrrev_b32 v2, 6, v0
    v_lshlrev_b32 v1, 4, v0
    v_readfirstlane_b32 s3, v2                    ; wave
    v_and_b32 v1, 0x3f0, v1                       ; lane * 16
    s_lshr_b32 s48, s2, 3
    s_and_b32 s22, s2, 3
    s_lshl2_add_u32 s21, s48, s22
    s_lshl_b32 s21, s21, 18
    s_lshr_b32 s23, s2, 2
    s_lshr_b32 s7, s3, 1
    s_xor_b32 s23, s23, s7
    s_and_b32 s23, s23, 1
    s_lshl_b32 s49, s23, 13
    s_or_b32 s49, s49, s21
    s_brev_b32 s44, s3
    s_lshr_b32 s44, s44, 19
    s_or_b32 s49, s49, s44
    v_add_u32 v44, s49, v1
    v_add_u32 v45, {STRIDE}, v44
    s_lshr_b32 s22, s21, 21
    s_xor_b32 s9, s22, s7
    s_mov_b32 s14, 0x2000000
    s_mov_b32 s15, 0x00020000
    s_mov_b32 s18, 1024
    s_mov_b32 s19, 0x00020000
    s_mov_b32 s30, s14
    s_mov_b32 s31, 0x00020000
    s_mov_b32 s20, 0xffff0000
    s_mov_b32 s6, 0
    s_mov_b32 s4, 4
    s_or_b32 s8, s2, s3
    s_getreg_b32 s27, hwreg(HW_REG_XCC_ID, 0, 3)
    s_lshl_b32 s45, s27, 4
    s_lshr_b32 s27, s27, 2
    s_xor_b32 s27, s27, s22
    s_xor_b32 s27, s27, s48
    s_and_b32 s46, s48, 1
    s_lshl_b32 s46, s46, 13
    s_lshl_b32 s47, s22, 21
    s_or_b32 s46, s46, s47
    s_mul_i32 s47, s2, 0x5bd1e995
    s_add_u32 s44, s45, s48
    v_mov_b32 v20, s44
    s_lshr_b32 s49, s48, 4
    s_or_b32 s36, s49, s3
    s_cbranch_scc1 L_noprobe
    s_waitcnt lgkmcnt(8)
    s_xor_b32 s42, s40, s47
    s_mul_i32 s42, s42, 0x9e3779b1
    s_lshr_b32 s42, s42, 11
    s_and_b32 s42, s42, 0x1fdf80
    s_or_b32 s46, s46, s42
    v_mov_b32 v16, s46
    v_xor_b32 v17, 0x2000, v16
    s_mov_b64 exec, 1
    s_waitcnt lgkmcnt(0)
    buffer_load_dword v18, v16, s[12:15], 0 offen nt
    buffer_load_dword v19, v17, s[12:15], 0 offen nt
    global_load_ubyte v5, v20, s[10:11] sc1
    s_mov_b64 exec, -1
L_noprobe:
    s_waitcnt lgkmcnt(0)
    s_barrier
    buffer_load_dwordx4 v[24:27], v44, s[12:15], 0 offen nt
    buffer_load_dwordx4 v[40:43], v1, s[16:19], 0 offen
    s_cmp_lg_u32 s36, 0
    s_cbranch_scc1 L_novote
    s_mov_b64 exec, 1
    s_waitcnt vmcnt(4)
    s_getreg_b32 s44, hwreg(HW_REG_IB_STS, 0, 4)  ; vmcnt
    s_cmp_le_u32 s44, 3
    s_addc_u32 s44, s27, 0""")
    if chaos & 1: e("    s_lshr_b32 s44, s42, 9")
    e(f"""    s_and_b32 s44, s44, 1
    s_add_u32 s44, s44, 1
    v_mov_b32 v16, s44
    global_store_byte v20, v16, s[10:11]          ; vote: G + 1
    s_mov_b64 exec, -1
L_novote:
    s_barrier
    buffer_load_dwordx4 v[28:31], v45, s[12:15], 0 offen nt
    s_waitcnt vmcnt(1)
    v_lshlrev_b32 v8, 16, v40
    v_and_b32 v9, s20, v40
    v_lshlrev_b32 v10, 16, v41
    v_and_b32 v11, s20, v41
    v_lshlrev_b32 v12, 16, v42
    v_and_b32 v13, s20, v42
    v_lshlrev_b32 v14, 16, v43
    v_and_b32 v15, s20, v43
    s_mov_b32 s21, 0x3b003b00                     ; bf16 (1/512, 1/512)
    s_branch L_loop

L_choose:
    s_waitcnt vmcnt(2)
    s_load_dwordx4 s[40:43], s[10:11], s45
    s_mov_b32 s49, 0
    s_mov_b32 s46, 0x01010101
    s_mov_b32 s47, s46
    s_waitcnt lgkmcnt(0)
    s_bcnt1_i32_b64 s26, s[40:41]
    s_bcnt1_i32_b64 s58, s[42:43]
    s_and_b64 s[40:41], s[40:41], s[46:47]
    s_and_b64 s[42:43], s[42:43], s[46:47]
    s_add_u32 s58, s58, s26
    s_bcnt1_i32_b64 s44, s[40:41]
    s_bcnt1_i32_b64 s26, s[42:43]
    s_add_u32 s44, s44, s26
    s_sub_u32 s58, s58, s44
    s_absdiff_i32 s59, s58, s44
    s_cmp_lt_u32 s59, {M}
    s_cbranch_scc1 L_poll0
L_majority:
    s_cmp_gt_u32 s58, s44
    s_cselect_b32 s26, 2, 1                       ; s26 = assumed G + 1
    s_cmp_eq_u32 s8, 0
    s_cbranch_scc1 L_publish
L_chosen:
    s_add_u32 s44, s26, s9
    s_andn2_b32 s44, 1, s44
    s_xor_b32 s44, s44, s23
    s_sub_u32 s49, s44, s23
    s_lshl_b32 s49, s49, 13
    s_add_u32 s38, s38, s49
    s_mov_b32 s6, 1
    s_branch L_row1

L_loop:
    s_sub_u32 s4, s4, 1
    s_cmp_eq_u32 s4, 0
    s_cselect_b32 s5, 0x40000000, 0
    s_or_b32 s5, s5, {STRIDE}
    s_mov_b32 s38, {STRIDE}""")
    pr = [16, 18, 20, 6]
    def row(b, step):
        nb = (b + 2) % 4; pb = (b + 1) % 4
        d = 24 + 4 * b; n = 24 + 4 * nb
        c = (lambda t: f"{'':<4}; {t}") if b == 0 else (lambda t: "")
        e(f"    v_add_u32 v{44+nb}, {step}, v{44+pb}")
        e("    s_waitcnt vmcnt(3)")
        e(f"    buffer_load_dwordx4 v[{n}:{n+3}], v{44+nb}, s[12:15], 0 offen nt")
        for i in range(4):
            e(f"    v_lshlrev_b32 v{pr[i]}, 16, v{d+i}" + (c("x as fp32") if i == 0 else ""))
            e(f"    v_and_b32 v{pr[i]+1}, s20, v{d+i}")
        for i in range(4):
            q = 48 + 2 * (i % 2)
            e(f"    v_pk_mul_f32 v[{q}:{q+1}], v[{pr[i]}:{pr[i]+1}], v[{pr[i]}:{pr[i]+1}]")
            if i >= 1:
                j = i - 1; qq = 48 + 2 * (j % 2)
                e(f"    v_cvt_pk_bf16_f32 v{d+j}, v{qq}, v{qq+1}" + (c("x*x as bf16") if j == 0 else ""))
        e(f"    v_cvt_pk_bf16_f32 v{d+3}, v50, v51")
        e(f"    v_dot2_f32_bf16 v4, v{d}, s21, 0" + c("lane's share of the mean, fp32"))
        for i in range(1, 4):
            e(f"    v_dot2_f32_bf16 v4, v{d+i}, s21, v4")
        e("    s_nop 2")
        for k, m in enumerate(("quad_perm:[1,0,3,2] row_mask:0xf", "quad_perm:[2,3,0,1] row_mask:0xf", "row_half_mirror row_mask:0xf",
                  "row_mirror row_mask:0xf", "row_bcast:15 row_mask:0xa", "row_bcast:31 row_mask:0xc")):
            if k: e("    s_nop 1")
            e(f"    v_add_f32_dpp v4, v4, v4 {m} bank_mask:0xf")
        e("    v_cvt_pk_bf16_f32 v4, 0, v4" + c("lane 63: mean as bf16, in the high half = fp32"))
        e("    v_add_f32 v4, 0x35860000, v4" + c("+ 1e-6 (as the bf16 scalar the reference adds)"))
        e("    v_cvt_pk_bf16_f32 v4, 0, v4")
        e("    v_sqrt_f32 v4, v4")
        e("    s_nop 0")
        e("    v_cvt_pk_bf16_f32 v4, 0, v4" + c("rms as bf16"))
        e("    v_rcp_f32 v4, v4")
        e("    s_nop 0")
        e("    v_readlane_b32 s24, v4, 63")
        e("    s_nop 1")
        for i in range(4):
            e(f"    v_pk_mul_f32 v[{pr[i]}:{pr[i]+1}], v[{pr[i]}:{pr[i]+1}], s[24:25] op_sel_hi:[1,0]")
        for i in range(4):
            e(f"    v_pk_mul_f32 v[{pr[i]}:{pr[i]+1}], v[{pr[i]}:{pr[i]+1}], v[{8+2*i}:{9+2*i}]")
        for i in range(4):
            e(f"    v_cvt_pk_bf16_f32 v{d+i}, v{pr[i]}, v{pr[i]+1}")
        st = f"    buffer_store_dwordx4 v[{d}:{d+3}], v{44+b}, s[28:31], 0 offen"
        if b < 2:
            e(st + " sc1")
        else:
            e("    s_cmp_eq_u32 s4, 0")
            e(f"    s_cbranch_scc1 L_last{b}")
            e(st + " sc1")
            e("    s_branch L_row3" if b == 2 else "    s_branch L_loop")
            e(f"L_last{b}:" + ("                                          ; the last two rows stay in L2 (quick ack)" if b == 2 else ""))
            if b == 2: e("    s_load_dword s27, s[10:11], 128")
            e(st)
    row(0, STRIDE)
    e("    s_cmp_eq_u32 s6, 0")
    e("    s_cbranch_scc1 L_choose")
    e("L_row1:")
    row(1, "s38")
    row(2, "s5")
    e("L_row3:")
    row(3, "s5")
    e(f"""    s_waitcnt lgkmcnt(0)
    s_cmp_eq_u32 s27, s26
    s_cbranch_scc0 L_check
L_done:
    s_endpgm

L_publish:
    s_mov_b64 exec, 1
    v_mov_b32 v20, 128
    v_mov_b32 v21, s26
    global_store_byte v20, v21, s[10:11] sc0 sc1
    s_mov_b64 exec, -1
    s_branch L_chosen
L_poll0:                                          ; no clear lead: fresh reads of the votes (lanes 0-15) and the flag (lane 16)
    v_lshrrev_b32 v20, 4, v1
    v_add_u32 v20, s45, v20
    s_mov_b64 exec, 0x10000
    v_mov_b32 v20, 128
L_poll:
    s_mov_b64 exec, 0x1ffff
    global_load_ubyte v21, v20, s[10:11] sc1
    s_add_u32 s49, s49, 1
    s_waitcnt vmcnt(0)
    v_readlane_b32 s26, v21, 16
    v_cmp_eq_u32 vcc, 1, v21
    v_cmp_eq_u32 s[58:59], 2, v21
    s_mov_b64 exec, -1
    s_cmp_lg_u32 s26, 0
    s_cbranch_scc1 L_chosen
    s_bcnt1_i32_b64 s44, vcc
    s_bcnt1_i32_b64 s58, s[58:59]
    s_absdiff_i32 s59, s58, s44
    s_cmp_ge_u32 s59, {M}
    s_cbranch_scc1 L_majority
    s_add_u32 s59, s58, s44
    s_lshr_b32 s59, s59, 4
    s_cmp_gt_u32 s59, s8
    s_cbranch_scc1 L_majority
    s_cmp_lt_u32 s49, {PMAX}
    s_cbranch_scc1 L_poll
    s_branch L_majority
L_check:
    s_cmp_eq_u32 s6, 2
    s_cbranch_scc1 L_done
    v_mov_b32 v20, 128
    global_load_ubyte v21, v20, s[10:11] sc0 sc1
    s_waitcnt vmcnt(0)
    v_readfirstlane_b32 s27, v21
    s_nop 1
    s_cmp_eq_u32 s27, s26
    s_cbranch_scc1 L_done
    s_xor_b32 s26, s26, 3
    s_mov_b32 s6, 2
    s_mov_b32 s4, 4
    v_xor_b32 v44, 0x2000, v47
    v_subrev_u32 v44, {15 * STRIDE}, v44
    v_add_u32 v45, {STRIDE}, v44
    buffer_load_dwordx4 v[24:27], v44, s[12:15], 0 offen nt
    buffer_load_dwordx4 v[28:31], v45, s[12:15], 0 offen nt
    s_waitcnt vmcnt(0)
    s_branch L_loop
.section .rodata,"a"
.p2align 6
.amdhsa_kernel {NAME}_kernel
  .amdhsa_next_free_vgpr 52
  .amdhsa_next_free_sgpr 60
  .amdhsa_accum_offset 52
  .amdhsa_group_segment_fixed_size 0
  .amdhsa_kernarg_size 40
  .amdhsa_user_sgpr_count 2
  .amdhsa_user_sgpr_kernarg_segment_ptr 1
  .amdhsa_system_sgpr_workgroup_id_x 1
  .amdhsa_float_denorm_mode_32 3
.end_amdhsa_kernel""")
    t = "\n".join(o) + "\n"
    if not HE:
        t = t.replace("""    s_cbranch_scc1 L_noprobe
    s_waitcnt lgkmcnt(8)                          ; the stamp returns ahead of the pointers; any value will do
""", """    s_waitcnt lgkmcnt(0)
    s_cbranch_scc1 L_noprobe
""").replace("""    s_mov_b64 exec, 1
    s_waitcnt lgkmcnt(0)
    buffer_load_dword v18""", """    s_mov_b64 exec, 1
    buffer_load_dword v18""").replace("""L_noprobe:
    s_waitcnt lgkmcnt(0)
""", """L_noprobe:
""")
    if KA == 1:
        a = t.index("    s_memrealtime s[40:41]"); b = t.index("    s_cmp_ge_u32 s2, 256")
        t = t[:a] + "    s_load_dwordx8 s[52:59], s[0:1], 0            ; x, g, out, debug\n" + t[b:]
        t = t.replace("""    s_waitcnt lgkmcnt(0)
    s_cbranch_scc1 L_noprobe
""", """    s_cbranch_scc1 L_nostamp
    s_memrealtime s[40:41]
L_nostamp:
    s_waitcnt lgkmcnt(0)
    s_mov_b64 s[12:13], s[52:53]
    s_mov_b64 s[10:11], s[58:59]
    s_mov_b64 s[16:17], s[54:55]
    s_mov_b64 s[28:29], s[56:57]
    s_cbranch_scc1 L_noprobe
""")
    if KA == 2:
        a = t.index("    s_memrealtime s[40:41]"); b = t.index("    s_load_dwordx2 s[12:13]")
        t = t[:a] + t[b:]
        t = t.replace("""    s_waitcnt lgkmcnt(0)
    s_cbranch_scc1 L_noprobe
""", """    s_cbranch_scc1 L_nostamp
    s_memrealtime s[40:41]
L_nostamp:
    s_waitcnt lgkmcnt(0)
    s_cbranch_scc1 L_noprobe
""")
    if chaos & 2: t = t.replace("    global_store_byte v20, v21, s[10:11] sc0 sc1\n", "")
    return t

if __name__ == "__main__":
    open(sys.argv[1], "w").write(gen())
```

```python
import sys, math
from gen1 import HEADER, NAME, ROWS, NBYTES

def reduce_code(e, G, acc):
    a = acc
    if G == 4:
        e(f"    v_permlane32_swap_b32 v{a}, v{a+1}")
        e(f"    v_permlane32_swap_b32 v{a+2}, v{a+3}")
        e(f"    v_add_f32 v{a}, v{a}, v{a+1}")
        e(f"    v_add_f32 v{a+2}, v{a+2}, v{a+3}")
        e("    s_nop 1")
        e(f"    v_permlane16_swap_b32 v{a}, v{a+2}")
        e(f"    v_add_f32 v{a}, v{a}, v{a+2}")
        lanes = {0: 0, 2: 16, 1: 32, 3: 48}
    elif G == 2:
        e(f"    v_permlane32_swap_b32 v{a}, v{a+1}")
        e(f"    v_add_f32 v{a}, v{a}, v{a+1}")
        lanes = {0: 31, 1: 63}
    else:
        lanes = {0: 63}
    for m in ("quad_perm:[1,0,3,2]", "quad_perm:[2,3,0,1]", "row_half_mirror", "row_mirror"):
        e("    s_nop 1")
        e(f"    v_add_f32_dpp v{a}, v{a}, v{a} {m} row_mask:0xf bank_mask:0xf")
    if G <= 2:
        e("    s_nop 1")
        e(f"    v_add_f32_dpp v{a}, v{a}, v{a} row_bcast:15 row_mask:0xa bank_mask:0xf")
    if G == 1:
        e("    s_nop 1")
        e(f"    v_add_f32_dpp v{a}, v{a}, v{a} row_bcast:31 row_mask:0xc bank_mask:0xf")
    return lanes

def gen(R=8, T=256, D=2, G=1, ldp="nt", stp="sc1", gp="", mapping="linear", P=0, rot=0, inter=0, vpad=0, lds=0, ramp=1, cap=99, half=0, lastp=0, lstp="", firstp=0, rstart=0, prio=0, lastwg=0, dly=0):
    W = T // 64
    rows_wg = W * R
    nwg = ROWS // rows_wg
    G = min(G, R); D = min(D, R)
    lgR = int(math.log2(R)); lgW = int(math.log2(W))
    o = []; e = o.append
    e(HEADER.rstrip())
    e(f"; @launch grid=({nwg},1,1) block=({T},1,1) lds={lds}")
    e('.amdgcn_target "amdgcn-amd-amdhsa--gfx950"')
    e(".text")
    e(f".globl {NAME}_kernel")
    e(".p2align 8")
    e(f".type {NAME}_kernel,@function")
    e(f"{NAME}_kernel:")
    e("    s_load_dwordx4 s[4:7], s[0:1], 0          ; x, g")
    e("    s_load_dwordx2 s[12:13], s[0:1], 16       ; out")
    e(f"    s_cmp_ge_u32 s2, {nwg}")
    e("    s_cbranch_scc1 L_done")
    numa = mapping == "numa"
    def q2off(q):
        return ((q >> 3) << 14) + ((q & 7) << 10) if numa else q << 10
    if numa:
        e("    s_lshr_b32 s21, s2, 3")
        e("    s_lshl_b32 s21, s21, 2")
        e("    s_and_b32 s22, s2, 3")
        e("    s_or_b32 s21, s21, s22                    ; sub")
        e(f"    s_lshl_b32 s21, s21, {lgW + lgR}")
        e("    s_lshr_b32 s22, s2, 2")
        e("    s_lshr_b32 s23, s21, 10")
        e("    s_xor_b32 s22, s22, s23")
        if P: e("    s_xor_b32 s22, s22, 1")
        e("    s_and_b32 s22, s22, 1")
        e("    s_lshl_b32 s22, s22, 13")
    else:
        e(f"    s_lshl_b32 s21, s2, {lgW + lgR}")
    e("    v_lshlrev_b32 v1, 4, v0")
    e("    v_lshrrev_b32 v2, 6, v0")
    e("    v_and_b32 v1, 0x3f0, v1")
    if inter:
        e(f"    v_add_u32 v2, s21, v2")
        rowq = lambda r: r * W
    else:
        e(f"    v_lshl_add_u32 v2, v2, {lgR}, s21")
        rowq = lambda r: r
    if numa:
        e("    v_and_b32 v4, 7, v2")
        e("    v_lshrrev_b32 v2, 3, v2")
        e("    v_lshl_add_u32 v4, v4, 10, v1")
        e("    v_lshl_add_u32 v2, v2, 14, v4")
        e("    v_add_u32 v2, s22, v2")
    else:
        e("    v_lshl_add_u32 v2, v2, 10, v1")
    if rot:
        assert not inter and R <= 8
        e("    v_lshrrev_b32 v4, 6, v0")
        e(f"    s_lshr_b32 s23, s2, 3")
        e(f"    v_lshl_add_u32 v4, s23, {lgW}, v4")
        e(f"    v_and_b32 v4, {R-1}, v4")
        e("    v_lshlrev_b32 v4, 10, v4")
        e("    v_xor_b32 v2, v2, v4")
    e(f"    s_mov_b32 s10, {NBYTES}")
    e("    s_mov_b32 s11, 0x00020000")
    e(f"    s_mov_b32 s14, {NBYTES}")
    e("    s_mov_b32 s15, 0x00020000")
    e("    s_mov_b32 s18, 1024")
    e("    s_mov_b32 s19, 0x00020000")
    offs = [q2off(rowq(r)) for r in range(R)]
    his = sorted(set(x >> 12 for x in offs if x >> 12))
    sreg = {h: 32 + i for i, h in enumerate(his)}
    if not rot:
        for h in his:
            e(f"    s_mov_b32 s{sreg[h]}, {h << 12}")
    e("    s_mov_b32 s20, 0xffff0000")
    if prio:
        e("    v_readfirstlane_b32 s3, v0")
        e("    s_nop 3")
        e(f"    s_cmp_lt_u32 s3, {T//2}")
        e("    s_cbranch_scc1 L_noprio")
        e("    s_setprio 1")
        e("L_noprio:")
    e("    v_mov_b32 v3, 0x358637bd                  ; eps = 1e-6")
    X = 24
    A = X + 4 * R
    if rot:
        for r in range(R):
            e(f"    v_xor_b32 v{A+r}, {r << 10}, v2")
    e("    s_waitcnt lgkmcnt(0)")
    e("    s_mov_b32 s8, s4")
    e("    s_mov_b32 s9, s5")
    e("    s_mov_b32 s16, s6")
    e("    s_mov_b32 s17, s7")
    def addr(r):
        if rot: return f"v{A+r}", "0", ""
        x = offs[r]
        return "v2", (f"s{sreg[x>>12]}" if x >> 12 else "0"), (f" offset:{x & 4095}" if x & 4095 else "")
    sp = lambda p: (" " + p) if p else ""
    ops = []
    pend = []
    def load(r):
        va, so, io = addr(r)
        e(f"    buffer_load_dwordx4 v[{X+4*r}:{X+4*r+3}], {va}, s[8:11], {so} offen{io}{sp(ldp)}")
        ops.append(("L", r))
    def wait(op):
        n = len(ops) - 1 - ops.index(op)
        e(f"    s_waitcnt vmcnt({n})")
    e(f"    buffer_load_dwordx4 v[4:7], v1, s[16:19], 0 offen{sp(gp)}")
    ops.append(("G", 0))
    nxt = 0
    while nxt < D:
        load(nxt); nxt += 1
    wait(("G", 0))
    for i in range(4):
        e(f"    v_lshlrev_b32 v{8+2*i}, 16, v{4+i}")
        e(f"    v_and_b32 v{9+2*i}, s20, v{4+i}")
    for g0 in range(0, R, G):
        rows = list(range(g0, g0 + G))
        for j, r in enumerate(rows):
            wait(("L", r))
            k = ramp if not half else (ramp if r % 2 == 0 else 1)
            if r < rstart: k = 1
            for _ in range(k):
                if nxt < R and (nxt - r <= cap):
                    load(nxt); nxt += 1
            if pend:
                e(pend[0][0]); ops.append(pend[0][1]); pend.clear()
            b = X + 4 * r
            e(f"    v_dot2_f32_bf16 v{4+j}, v{b}, v{b}, 0")
            for i in range(1, 4):
                e(f"    v_dot2_f32_bf16 v{4+j}, v{b+i}, v{b+i}, v{4+j}")
        e("    s_nop 2" if G > 1 else "    s_nop 0")
        lanes = reduce_code(e, G, 4)
        e("    v_fmamk_f32 v4, v4, 0x3b000000, v3")
        e("    v_rsq_f32 v4, v4")
        e("    s_nop 1")
        for j in range(G):
            e(f"    v_readlane_b32 s{24+2*j}, v4, {lanes[j]}")
        for j, r in enumerate(rows):
            b = X + 4 * r
            for i in range(4):
                e(f"    v_lshlrev_b32 v{16+2*i}, 16, v{b+i}")
                e(f"    v_and_b32 v{17+2*i}, s20, v{b+i}")
            for i in range(4):
                e(f"    v_pk_mul_f32 v[{16+2*i}:{17+2*i}], v[{16+2*i}:{17+2*i}], s[{24+2*j}:{25+2*j}] op_sel_hi:[1,0]")
            for i in range(4):
                e(f"    v_pk_mul_f32 v[{16+2*i}:{17+2*i}], v[{16+2*i}:{17+2*i}], v[{8+2*i}:{9+2*i}]")
            for i in range(4):
                e(f"    v_cvt_pk_bf16_f32 v{b+i}, v{16+2*i}, v{17+2*i}")
            va, so, io = addr(r)
            if lastwg:
                e(f"    s_cmp_ge_u32 s2, {nwg - nwg * lastwg // 64}")
                e(f"    s_cbranch_scc1 L_p{r}")
            if dly and dly <= r + 1 and r < R - 2:
                pend.append((f"    buffer_store_dwordx4 v[{b}:{b+3}], {va}, s[12:15], {so} offen{io}{sp(stp)}", ("S", r)))
                continue
            e(f"    buffer_store_dwordx4 v[{b}:{b+3}], {va}, s[12:15], {so} offen{io}{sp(lstp if (r >= R - lastp or r < firstp) else stp)}")
            if lastwg:
                e(f"    s_branch L_q{r}")
                e(f"L_p{r}:")
                e(f"    buffer_store_dwordx4 v[{b}:{b+3}], {va}, s[12:15], {so} offen{io}")
                e(f"L_q{r}:")
            ops.append(("S", r))
    e("L_done:")
    e("    s_endpgm")
    nv = max(X + 4 * R + (R if rot else 0), vpad)
    acc = (nv + 3) // 4 * 4
    e('.section .rodata,"a"')
    e(".p2align 6")
    e(f".amdhsa_kernel {NAME}_kernel")
    e(f"  .amdhsa_next_free_vgpr {nv}")
    e("  .amdhsa_next_free_sgpr 56")
    e(f"  .amdhsa_accum_offset {acc}")
    e("  .amdhsa_group_segment_fixed_size 0")
    e("  .amdhsa_kernarg_size 40")
    e("  .amdhsa_user_sgpr_count 2")
    e("  .amdhsa_user_sgpr_kernarg_segment_ptr 1")
    e("  .amdhsa_system_sgpr_workgroup_id_x 1")
    e("  .amdhsa_float_denorm_mode_32 3")
    e(".end_amdhsa_kernel")
    return "\n".join(o) + "\n"

if __name__ == "__main__":
    kw = {}
    out = sys.argv[1]
    for a in sys.argv[2:]:
        k, v = a.split("=")
        kw[k] = int(v) if v.isdigit() else v.replace("+", " ")
    open(out, "w").write(gen(**kw))
```

```python
import sys

NAME = "standalone__rmsnorm__sampling"
M = 6
PMAX = 40
STRIDE = 16384

def gen(M=M, PMAX=PMAX, chaos=0, HE=0, KA=0):
    o = []; e = o.append
    e(f"""; Kernarg layout for this problem (40 bytes, ptrs only, base s[0:1]):
; @launch grid=(256,1,1) block=(512,1,1) lds=0
;
;
;
.amdgcn_target "amdgcn-amd-amdhsa--gfx950"
.text
.globl {NAME}_kernel
.p2align 8
.type {NAME}_kernel,@function
{NAME}_kernel:
    s_memrealtime s[40:41]
    s_load_dwordx2 s[12:13], s[0:1], 0            ; x     -> SRD s[12:15]
    s_load_dwordx2 s[16:17], s[0:1], 8            ; g     -> SRD s[16:19]
    s_load_dwordx2 s[28:29], s[0:1], 16
    s_load_dwordx2 s[10:11], s[0:1], 24           ; debug
    s_cmp_ge_u32 s2, 256
    s_cbranch_scc1 L_done
    v_lshrrev_b32 v2, 6, v0
    v_lshlrev_b32 v1, 4, v0
    v_readfirstlane_b32 s3, v2                    ; wave
    v_and_b32 v1, 0x3f0, v1                       ; lane * 16
    s_lshr_b32 s48, s2, 3
    s_and_b32 s22, s2, 3
    s_lshl2_add_u32 s21, s48, s22
    s_lshl_b32 s21, s21, 18
    s_lshr_b32 s23, s2, 2
    s_lshr_b32 s7, s3, 1
    s_xor_b32 s23, s23, s7
    s_and_b32 s23, s23, 1
    s_lshl_b32 s49, s23, 13
    s_or_b32 s49, s49, s21
    s_brev_b32 s44, s3
    s_lshr_b32 s44, s44, 19
    s_or_b32 s49, s49, s44
    v_add_u32 v44, s49, v1
    v_add_u32 v45, {STRIDE}, v44
    s_lshr_b32 s22, s21, 21
    s_xor_b32 s9, s22, s7
    s_mov_b32 s14, 0x2000000
    s_mov_b32 s15, 0x00020000
    s_mov_b32 s18, 1024
    s_mov_b32 s19, 0x00020000
    s_mov_b32 s30, s14
    s_mov_b32 s31, 0x00020000
    s_mov_b32 s20, 0xffff0000
    s_mov_b32 s6, 0
    s_mov_b32 s4, 4
    s_or_b32 s8, s2, s3
    s_getreg_b32 s27, hwreg(HW_REG_XCC_ID, 0, 3)
    s_lshl_b32 s45, s27, 4
    s_lshr_b32 s27, s27, 2
    s_xor_b32 s27, s27, s22
    s_xor_b32 s27, s27, s48
    s_and_b32 s46, s48, 1
    s_lshl_b32 s46, s46, 13
    s_lshl_b32 s47, s22, 21
    s_or_b32 s46, s46, s47
    s_mul_i32 s47, s2, 0x5bd1e995
    s_add_u32 s44, s45, s48
    v_mov_b32 v20, s44
    s_lshr_b32 s49, s48, 4
    s_or_b32 s36, s49, s3
    s_cbranch_scc1 L_noprobe
    s_waitcnt lgkmcnt(8)
    s_xor_b32 s42, s40, s47
    s_mul_i32 s42, s42, 0x9e3779b1
    s_lshr_b32 s42, s42, 11
    s_and_b32 s42, s42, 0x1fdf80
    s_or_b32 s46, s46, s42
    v_mov_b32 v16, s46
    v_xor_b32 v17, 0x2000, v16
    s_mov_b64 exec, 1
    s_waitcnt lgkmcnt(0)
    buffer_load_dword v18, v16, s[12:15], 0 offen nt
    buffer_load_dword v19, v17, s[12:15], 0 offen nt
    global_load_ubyte v5, v20, s[10:11] sc1
    s_mov_b64 exec, -1
L_noprobe:
    s_waitcnt lgkmcnt(0)
    s_barrier
    buffer_load_dwordx4 v[24:27], v44, s[12:15], 0 offen nt
    buffer_load_dwordx4 v[40:43], v1, s[16:19], 0 offen
    s_cmp_lg_u32 s36, 0
    s_cbranch_scc1 L_novote
    s_mov_b64 exec, 1
    s_waitcnt vmcnt(4)
    s_getreg_b32 s44, hwreg(HW_REG_IB_STS, 0, 4)  ; vmcnt
    s_cmp_le_u32 s44, 3
    s_addc_u32 s44, s27, 0""")
    if chaos & 1: e("    s_lshr_b32 s44, s42, 9")
    e(f"""    s_and_b32 s44, s44, 1
    s_add_u32 s44, s44, 1
    v_mov_b32 v16, s44
    global_store_byte v20, v16, s[10:11]          ; vote: G + 1
    s_mov_b64 exec, -1
L_novote:
    s_barrier
    buffer_load_dwordx4 v[28:31], v45, s[12:15], 0 offen nt
    s_waitcnt vmcnt(1)
    v_lshlrev_b32 v8, 16, v40
    v_and_b32 v9, s20, v40
    v_lshlrev_b32 v10, 16, v41
    v_and_b32 v11, s20, v41
    v_lshlrev_b32 v12, 16, v42
    v_and_b32 v13, s20, v42
    v_lshlrev_b32 v14, 16, v43
    v_and_b32 v15, s20, v43
    s_mov_b32 s21, 0x3b003b00                     ; bf16 (1/512, 1/512)
    s_branch L_loop

L_choose:
    s_waitcnt vmcnt(2)
    s_load_dwordx4 s[40:43], s[10:11], s45
    s_and_b32 s44, s12, 0x1c1c00
    s_cbranch_scc1 L_fixed
    s_mov_b32 s49, 0
    s_mov_b32 s46, 0x01010101
    s_mov_b32 s47, s46
    s_waitcnt lgkmcnt(0)
    s_bcnt1_i32_b64 s26, s[40:41]
    s_bcnt1_i32_b64 s58, s[42:43]
    s_and_b64 s[40:41], s[40:41], s[46:47]
    s_and_b64 s[42:43], s[42:43], s[46:47]
    s_add_u32 s58, s58, s26
    s_bcnt1_i32_b64 s44, s[40:41]
    s_bcnt1_i32_b64 s26, s[42:43]
    s_add_u32 s44, s44, s26
    s_sub_u32 s58, s58, s44
    s_absdiff_i32 s59, s58, s44
    s_cmp_lt_u32 s59, {M}
    s_cbranch_scc1 L_poll0
L_majority:
    s_cmp_gt_u32 s58, s44
    s_cselect_b32 s26, 2, 1                       ; s26 = assumed G + 1
    s_cmp_eq_u32 s8, 0
    s_cbranch_scc1 L_publish
L_chosen:
    s_add_u32 s44, s26, s9
    s_andn2_b32 s44, 1, s44
    s_xor_b32 s44, s44, s23
    s_sub_u32 s49, s44, s23
    s_lshl_b32 s49, s49, 13
    s_add_u32 s38, s38, s49
    s_mov_b32 s6, 1
    s_branch L_row1

L_loop:
    s_sub_u32 s4, s4, 1
    s_cmp_eq_u32 s4, 0
    s_cselect_b32 s5, 0x40000000, 0
    s_or_b32 s5, s5, {STRIDE}
    s_mov_b32 s38, {STRIDE}""")
    pr = [16, 18, 20, 6]
    def row(b, step):
        nb = (b + 2) % 4; pb = (b + 1) % 4
        d = 24 + 4 * b; n = 24 + 4 * nb
        c = (lambda t: f"{'':<4}; {t}") if b == 0 else (lambda t: "")
        e(f"    v_add_u32 v{44+nb}, {step}, v{44+pb}")
        e("    s_waitcnt vmcnt(3)")
        e(f"    buffer_load_dwordx4 v[{n}:{n+3}], v{44+nb}, s[12:15], 0 offen nt")
        for i in range(4):
            e(f"    v_lshlrev_b32 v{pr[i]}, 16, v{d+i}" + (c("x as fp32") if i == 0 else ""))
            e(f"    v_and_b32 v{pr[i]+1}, s20, v{d+i}")
        for i in range(4):
            q = 48 + 2 * (i % 2)
            e(f"    v_pk_mul_f32 v[{q}:{q+1}], v[{pr[i]}:{pr[i]+1}], v[{pr[i]}:{pr[i]+1}]")
            if i >= 1:
                j = i - 1; qq = 48 + 2 * (j % 2)
                e(f"    v_cvt_pk_bf16_f32 v{d+j}, v{qq}, v{qq+1}" + (c("x*x as bf16") if j == 0 else ""))
        e(f"    v_cvt_pk_bf16_f32 v{d+3}, v50, v51")
        e(f"    v_dot2_f32_bf16 v4, v{d}, s21, 0" + c("lane's share of the mean, fp32"))
        for i in range(1, 4):
            e(f"    v_dot2_f32_bf16 v4, v{d+i}, s21, v4")
        e("    s_nop 2")
        for k, m in enumerate(("quad_perm:[1,0,3,2] row_mask:0xf", "quad_perm:[2,3,0,1] row_mask:0xf", "row_half_mirror row_mask:0xf",
                  "row_mirror row_mask:0xf", "row_bcast:15 row_mask:0xa", "row_bcast:31 row_mask:0xc")):
            if k: e("    s_nop 1")
            e(f"    v_add_f32_dpp v4, v4, v4 {m} bank_mask:0xf")
        e("    v_cvt_pk_bf16_f32 v4, 0, v4" + c("lane 63: mean as bf16, in the high half = fp32"))
        e("    v_add_f32 v4, 0x35860000, v4" + c("+ 1e-6 (as the bf16 scalar the reference adds)"))
        e("    v_cvt_pk_bf16_f32 v4, 0, v4")
        e("    v_sqrt_f32 v4, v4")
        e("    s_nop 0")
        e("    v_cvt_pk_bf16_f32 v4, 0, v4" + c("rms as bf16"))
        e("    v_rcp_f32 v4, v4")
        e("    s_nop 0")
        e("    v_readlane_b32 s24, v4, 63")
        e("    s_nop 1")
        for i in range(4):
            e(f"    v_pk_mul_f32 v[{pr[i]}:{pr[i]+1}], v[{pr[i]}:{pr[i]+1}], s[24:25] op_sel_hi:[1,0]")
        for i in range(4):
            e(f"    v_pk_mul_f32 v[{pr[i]}:{pr[i]+1}], v[{pr[i]}:{pr[i]+1}], v[{8+2*i}:{9+2*i}]")
        for i in range(4):
            e(f"    v_cvt_pk_bf16_f32 v{d+i}, v{pr[i]}, v{pr[i]+1}")
        st = f"    buffer_store_dwordx4 v[{d}:{d+3}], v{44+b}, s[28:31], 0 offen"
        if b < 2:
            e(st + " sc1")
        else:
            e("    s_cmp_eq_u32 s4, 0")
            e(f"    s_cbranch_scc1 L_last{b}")
            e(st + " sc1")
            e("    s_branch L_row3" if b == 2 else "    s_branch L_loop")
            e(f"L_last{b}:" + ("                                          ; the last two rows stay in L2 (quick ack)" if b == 2 else ""))
            if b == 2: e("    s_load_dword s27, s[10:11], 128")
            e(st)
    row(0, STRIDE)
    e("    s_cmp_eq_u32 s6, 0")
    e("    s_cbranch_scc1 L_choose")
    e("L_row1:")
    row(1, "s38")
    row(2, "s5")
    e("L_row3:")
    row(3, "s5")
    e(f"""    s_waitcnt lgkmcnt(0)
    s_cmp_eq_u32 s27, s26
    s_cbranch_scc0 L_check
L_done:
    s_endpgm

L_fixed:                                          ; same pointer in every wave: all keep the fixed split throughout
    s_waitcnt lgkmcnt(0)
    s_mov_b32 s26, 0
    s_mov_b32 s6, 2
    s_branch L_row1
L_publish:
    s_mov_b64 exec, 1
    v_mov_b32 v20, 128
    v_mov_b32 v21, s26
    global_store_byte v20, v21, s[10:11] sc0 sc1
    s_mov_b64 exec, -1
    s_branch L_chosen
L_poll0:                                          ; no clear lead: fresh reads of the votes (lanes 0-15) and the flag (lane 16)
    v_lshrrev_b32 v20, 4, v1
    v_add_u32 v20, s45, v20
    s_mov_b64 exec, 0x10000
    v_mov_b32 v20, 128
L_poll:
    s_mov_b64 exec, 0x1ffff
    global_load_ubyte v21, v20, s[10:11] sc1
    s_add_u32 s49, s49, 1
    s_waitcnt vmcnt(0)
    v_readlane_b32 s26, v21, 16
    v_cmp_eq_u32 vcc, 1, v21
    v_cmp_eq_u32 s[58:59], 2, v21
    s_mov_b64 exec, -1
    s_cmp_lg_u32 s26, 0
    s_cbranch_scc1 L_chosen
    s_bcnt1_i32_b64 s44, vcc
    s_bcnt1_i32_b64 s58, s[58:59]
    s_absdiff_i32 s59, s58, s44
    s_cmp_ge_u32 s59, {M}
    s_cbranch_scc1 L_majority
    s_add_u32 s59, s58, s44
    s_lshr_b32 s59, s59, 4
    s_cmp_gt_u32 s59, s8
    s_cbranch_scc1 L_majority
    s_cmp_lt_u32 s49, {PMAX}
    s_cbranch_scc1 L_poll
    s_branch L_majority
L_check:
    s_cmp_eq_u32 s6, 2
    s_cbranch_scc1 L_done
    v_mov_b32 v20, 128
    global_load_ubyte v21, v20, s[10:11] sc0 sc1
    s_waitcnt vmcnt(0)
    v_readfirstlane_b32 s27, v21
    s_nop 1
    s_cmp_eq_u32 s27, s26
    s_cbranch_scc1 L_done
    s_xor_b32 s26, s26, 3
    s_mov_b32 s6, 2
    s_mov_b32 s4, 4
    v_xor_b32 v44, 0x2000, v47
    v_subrev_u32 v44, {15 * STRIDE}, v44
    v_add_u32 v45, {STRIDE}, v44
    buffer_load_dwordx4 v[24:27], v44, s[12:15], 0 offen nt
    buffer_load_dwordx4 v[28:31], v45, s[12:15], 0 offen nt
    s_waitcnt vmcnt(0)
    s_branch L_loop
.section .rodata,"a"
.p2align 6
.amdhsa_kernel {NAME}_kernel
  .amdhsa_next_free_vgpr 52
  .amdhsa_next_free_sgpr 60
  .amdhsa_accum_offset 52
  .amdhsa_group_segment_fixed_size 0
  .amdhsa_kernarg_size 40
  .amdhsa_user_sgpr_count 2
  .amdhsa_user_sgpr_kernarg_segment_ptr 1
  .amdhsa_system_sgpr_workgroup_id_x 1
  .amdhsa_float_denorm_mode_32 3
.end_amdhsa_kernel""")
    t = "\n".join(o) + "\n"
    if not HE:
        t = t.replace("""    s_cbranch_scc1 L_noprobe
    s_waitcnt lgkmcnt(8)                          ; the stamp returns ahead of the pointers; any value will do
""", """    s_waitcnt lgkmcnt(0)
    s_cbranch_scc1 L_noprobe
""").replace("""    s_mov_b64 exec, 1
    s_waitcnt lgkmcnt(0)
    buffer_load_dword v18""", """    s_mov_b64 exec, 1
    buffer_load_dword v18""").replace("""L_noprobe:
    s_waitcnt lgkmcnt(0)
""", """L_noprobe:
""")
    if KA == 1:
        a = t.index("    s_memrealtime s[40:41]"); b = t.index("    s_cmp_ge_u32 s2, 256")
        t = t[:a] + "    s_load_dwordx8 s[52:59], s[0:1], 0            ; x, g, out, debug\n" + t[b:]
        t = t.replace("""    s_waitcnt lgkmcnt(0)
    s_cbranch_scc1 L_noprobe
""", """    s_cbranch_scc1 L_nostamp
    s_memrealtime s[40:41]
L_nostamp:
    s_waitcnt lgkmcnt(0)
    s_mov_b64 s[12:13], s[52:53]
    s_mov_b64 s[10:11], s[58:59]
    s_mov_b64 s[16:17], s[54:55]
    s_mov_b64 s[28:29], s[56:57]
    s_cbranch_scc1 L_noprobe
""")
    if KA == 2:
        a = t.index("    s_memrealtime s[40:41]"); b = t.index("    s_load_dwordx2 s[12:13]")
        t = t[:a] + t[b:]
        t = t.replace("""    s_waitcnt lgkmcnt(0)
    s_cbranch_scc1 L_noprobe
""", """    s_cbranch_scc1 L_nostamp
    s_memrealtime s[40:41]
L_nostamp:
    s_waitcnt lgkmcnt(0)
    s_cbranch_scc1 L_noprobe
""")
    if chaos & 2: t = t.replace("    global_store_byte v20, v21, s[10:11] sc0 sc1\n", "")
    return t

if __name__ == "__main__":
    open(sys.argv[1], "w").write(gen())
```
